```python
import torch

def _softmax(x, axis=-1):
    return torch.softmax(x, dim=axis)
def _gelu(x):
    return torch.nn.functional.gelu(x, approximate="tanh")
def _silu(x):
    return torch.nn.functional.silu(x)
def _sigmoid(x):
    return torch.sigmoid(x)
def _layernorm(x, axis=-1, eps=1e-5):
    m = x.mean(dim=axis, keepdim=True)
    v = x.var(dim=axis, keepdim=True, unbiased=False)
    return (x - m) / torch.sqrt(v + eps)
def _scatter_add(tgt, idx, src, axis=0):
    return tgt.clone().index_add_(axis, idx, src)
def _segment_sum(src, seg, n):
    out = torch.zeros((n,) + src.shape[1:], dtype=src.dtype)
    return out.index_add_(0, seg, src)
def _pad(x, pw):
    flat = tuple(v for pair in reversed(pw) for v in pair)
    return torch.nn.functional.pad(x, flat)

kernel_name = 'standalone__cheap_equivariant_egnn__graph'

def setup_inputs():

    _w = (lambda a: (lambda t: t.to(torch.bfloat16) if t.is_floating_point() else t)(torch.as_tensor(a)))
    N, deg, D, De = 25000, 16, 128, max(4, 1)
    E = N * deg
    return {
        "h": _w((lambda *s: torch.randn(*s, dtype=torch.bfloat16) * 0.2)(N, D)),
        "pos": _w((lambda *s: torch.randn(*s, dtype=torch.bfloat16) * 0.8)(N, 3)),
        "e_attr": _w((lambda *s: torch.randn(*s, dtype=torch.bfloat16) * 0.8)(E, De)),
        "src": _w((lambda lo, hi, *s: torch.randint(lo, hi, s))(0, N, E).to(torch.int64)),
        "dst": _w((lambda lo, hi, *s: torch.randint(lo, hi, s))(0, N, E).to(torch.int64)),
        "w_e": _w(0.1 * (lambda *s: torch.randn(*s, dtype=torch.bfloat16) * 0.8)(2 * D + 1 + De, D)),
        "w_x": _w(0.1 * (lambda *s: torch.randn(*s, dtype=torch.bfloat16) * 0.2)(D, 1)),
        "w_h": _w(0.1 * (lambda *s: torch.randn(*s, dtype=torch.bfloat16) * 0.2)(2 * D, D)),
    }

def reference(h, pos, e_attr, src, dst, w_e, w_x, w_h):
    N, D = h.shape[0], h.shape[1]
    diff = pos[dst] - pos[src]
    dist2 = torch.sum(diff * diff, axis=-1, keepdims=True)
    e_in = torch.concatenate([h[dst], h[src], dist2, e_attr], axis=-1)
    m_ij = _silu(e_in @ w_e)
    coord_scale = m_ij @ w_x
    pos_new = pos + _segment_sum(diff * coord_scale, dst, N)
    m_i = _segment_sum(m_ij, dst, N)
    h_new = h + _silu(torch.concatenate([h, m_i], axis=-1) @ w_h)
    return h_new, pos_new
```

```python
import re

class Asm:
    def __init__(self):
        self.lines = []
    def __call__(self, s=""):
        for l in s.split("\n"):
            l = l.strip()
            if not l:
                continue
            if l.endswith(":") or l.startswith(".") or l.startswith(";"):
                self.lines.append(l)
            else:
                self.lines.append("    " + l)
    def text(self):
        return "\n".join(self.lines) + "\n"

class Regs:
    def __init__(self, prefix, start, limit):
        self.p, self.n, self.limit, self.names = prefix, start, limit, {}
        self.hi = start
    def alloc(self, name, cnt=1, align=None):
        if align is None:
            align = 1 if cnt == 1 else (2 if self.p == "v" else min(cnt, 4))
        self.n = (self.n + align - 1) // align * align
        r = self.n
        self.n += cnt
        assert self.n <= self.limit, (name, self.n)
        self.hi = max(self.hi, self.n)
        self.names[name] = (r, cnt)
        return r

def v(r, n=1):
    return f"v{r}" if n == 1 else f"v[{r}:{r+n-1}]"
def s(r, n=1):
    return f"s{r}" if n == 1 else f"s[{r}:{r+n-1}]"

TRANS = ("v_exp_f32", "v_log_f32", "v_rcp_f32", "v_rsq_f32", "v_sqrt_f32", "v_sin_f32", "v_cos_f32", "v_rcp_iflag_f32")
REG_RE = re.compile(r"^(-|\|)?(abs\()?([vsa])(?:(\d+)|\[(\d+):(\d+)\])\)?\|?$")

def regs_of(tok):
    tok = tok.strip()
    if tok == "vcc": return {("s", "vcc")}
    if tok in ("vcc_lo", "vcc_hi"): return {("s", "vcc")}
    if tok in ("exec", "exec_lo", "exec_hi"): return {("s", "exec")}
    if tok == "m0": return {("s", "m0")}
    m = REG_RE.match(tok)
    if not m: return set()
    k = m.group(3)
    if m.group(4) is not None: lo = hi = int(m.group(4))
    else: lo, hi = int(m.group(5)), int(m.group(6))
    return {(k, i) for i in range(lo, hi + 1)}

class Ins:
    def __init__(self, text, idx):
        self.text, self.idx = text, idx
        t = text.split(";")[0].strip()
        parts = t.split(None, 1)
        self.op = parts[0]
        rest = parts[1] if len(parts) > 1 else ""
        toks = [x.strip() for x in rest.split(",")] if rest else []
        self.mods = ""
        if toks:
            last = toks[-1].split(None, 1)
            mod_at = None
            out = []
            for i, x in enumerate(toks):
                sp = x.split(None, 1)
                out.append(sp[0])
                if len(sp) > 1:
                    self.mods = sp[1] + " " + ",".join(toks[i+1:])
                    break
            toks = out
        self.toks = toks
        op = self.op
        self.mfma = op.startswith("v_mfma")
        self.valu = op.startswith("v_") and not self.mfma
        self.trans = op.replace("_e32", "").replace("_e64", "") in TRANS
        self.ds = op.startswith("ds_")
        self.vmem = op.startswith(("buffer_", "global_", "flat_"))
        self.salu = op.startswith("s_")
        self.dpp = "row_" in self.mods or "quad_perm" in self.mods or "wave_" in self.mods or op.endswith("_dpp")
        self.sdwa_dst = "dst_sel:" in self.mods and "dst_sel:DWORD" not in self.mods
        R = [regs_of(x) for x in toks]
        self.w, self.r = set(), set()
        self.srcc = set(); self.srcab = set(); self.wide_data = set()
        if self.mfma:
            self.w = R[0]; self.srcab = R[1] | R[2]; self.srcc = R[3]; self.r = self.srcab | self.srcc
            self.passes = 8 if "32x32x16" in op else 4
        elif self.valu:
            nd = 1
            if re.match(r"v_(add|sub|subrev|addc|subb)_co_", op) or op.startswith("v_mad_u64"): nd = 2
            for x in R[:nd]: self.w |= x
            for x in R[nd:]: self.r |= x
            if op.startswith("v_cmpx"): self.w |= {("s", "exec")}
            if op.startswith(("v_fmac", "v_pk_fmac", "v_dot2c", "v_writelane")) or "UNUSED_PRESERVE" in self.mods or self.dpp: self.r |= R[0]
            if op.startswith("v_permlane") or op.startswith("v_swap"):
                self.w |= R[1]; self.r |= R[0]
            if op.startswith("v_cndmask") and len(toks) == 3: self.r |= {("s", "vcc")}
        elif self.ds:
            if "read" in op or "rtn" in op or "permute" in op or "swizzle" in op:
                self.w = R[0]
                for x in R[1:]: self.r |= x
            else:
                for x in R: self.r |= x
        elif self.vmem:
            is_lds = " lds" in (" " + self.mods) or "_lds_" in op
            if "load" in op and not is_lds:
                self.w = R[0]
                for x in R[1:]: self.r |= x
            else:
                for x in R: self.r |= x
                if "store" in op and ("x3" in op or "x4" in op):
                    self.wide_data = R[0] if op.startswith("buffer") else R[1]
            self.is_lds = is_lds
        elif self.salu:
            if op.startswith(("s_cmp", "s_cbranch", "s_branch", "s_waitcnt", "s_barrier", "s_nop", "s_endpgm", "s_setprio", "s_sleep", "s_bitcmp")):
                for x in R: self.r |= x
            else:
                if R: self.w = R[0]
                for x in R[1:]: self.r |= x
                if "saveexec" in op: self.w |= {("s", "exec")}
        self.states = 1
        if op == "s_nop": self.states = int(toks[0], 0) + 1

def need(p, c):
    n = 0
    vw = {x for x in p.w if x[0] in "va"}
    sw = {x for x in p.w if x[0] == "s"}
    if p.valu:
        if c.mfma and vw & c.r: n = max(n, 2)
        if c.valu and c.dpp and vw & c.r: n = max(n, 2)
        if c.op.startswith("v_permlane") and vw & (c.r | c.w): n = max(n, 2)
        if c.op.startswith(("v_readlane", "v_readfirstlane")) and vw & c.r: n = max(n, 1)
        if p.trans and (c.valu and not c.trans) and vw & c.r: n = max(n, 1)
        if p.sdwa_dst and c.valu and vw & (c.r | c.w): n = max(n, 1)
        if sw & c.r:
            if c.vmem: n = max(n, 5)
            if c.valu or c.mfma:
                n = max(n, 4 if c.op.startswith(("v_readlane", "v_writelane")) else 2)
        if ("s", "exec") in sw:
            if c.dpp: n = max(n, 5)
            if c.mfma or c.op.startswith(("v_readlane", "v_readfirstlane", "v_writelane", "v_permlane")): n = max(n, 4)
    if p.mfma:
        big = {8: 12, 4: 8}[p.passes]
        if c.mfma:
            if p.w & c.srcab: n = max(n, big)
            if p.w & c.srcc and p.w != c.srcc: n = max(n, big - 2)
            if p.w & c.w and p.w != c.srcc and not (p.w == c.w): n = max(n, big - 2)
        elif (c.valu or c.ds or c.vmem) and p.w & (c.r | c.w): n = max(n, big)
        if (c.valu or c.ds or c.vmem) and p.srcc & c.w and not p.w & c.w: n = max(n, {8: 7, 4: 3}[p.passes])
    if p.wide_data and p.wide_data & c.w: n = max(n, 2)
    if p.salu and ("s", "m0") in p.w and c.vmem and getattr(c, "is_lds", False): n = max(n, 1)
    return n

def check(text):
    ins, labels = [], {}
    for l in text.split("\n"):
        t = l.split(";")[0].strip()
        if not t: continue
        if t.endswith(":"):
            labels[t[:-1]] = len(ins); continue
        if t.startswith("."): continue
        ins.append(Ins(t, len(ins)))
    def succ(i):
        x = ins[i]
        if x.op == "s_endpgm": return []
        if x.op == "s_branch": return [labels[x.toks[0]]]
        if x.op.startswith("s_cbranch"): return [labels[x.toks[0]], i + 1]
        return [i + 1] if i + 1 < len(ins) else []
    bad = set()
    for p in ins:
        if not (p.valu or p.mfma or p.wide_data or (p.salu and ("s", "m0") in p.w)): continue
        stack = [(j, 0) for j in succ(p.idx)]
        best = {}
        while stack:
            j, d = stack.pop()
            if j >= len(ins) or d >= 12 or best.get(j, 99) <= d: continue
            best[j] = d
            c = ins[j]
            n = need(p, c)
            if n > d: bad.add((p.idx, j, n, d))
            for k in succ(j): stack.append((k, d + c.states))
    out = []
    for a, b, n, d in sorted(bad):
        out.append(f"HAZARD need {n} have {d}: [{a}] {ins[a].text}  ->  [{b}] {ins[b].text}")
    return out
```

```python
from asmlib import *

def k2(e, G):
    N, E, NPW, CH = G.N, G.E, G.NPW, G.CH
    MFMA, srd, scan_dpp, tr_addr, gemm = G.MFMA, G.srd, G.scan_dpp, G.tr_addr, G.gemm
    P_H, P_POS, P_WE, P_WX, P_WH = G.P_H, G.P_POS, G.P_WE, G.P_WX, G.P_WH
    L_OH, L_CNT, L_FLAG, L_WX, L_PACC, L_POSL, L_TILES = 0, 128, 192, 256, 768, 1944, 2560
    TB, CAP = 768, 160
    L_H, L_WD, L_WT, L_SCR = 64000, 89600, 122368, 155136
    lds = 163840
    S = Regs("s", 20, 102); V = Regs("v", 1, 256)
    sOUT = S.alloc("out", 4); sWS = S.alloc("ws", 2)
    rH, rO, rB, rREC, rPOS, rX = (S.alloc(n, 4) for n in ("h", "o", "b", "rec", "pos", "x"))
    sW, sT, sHF, sA, sB_, sC, sNV, sK, sBeta, sTot, sRound, sNT, sI, sGQ, sNQ = (S.alloc(n) for n in "w t hf a b c nv k beta tot round nt i gq nq".split())
    sD0, sD1, sD2, sB0, sB1, sB2, sO1, sO2, sO3, sPend, sMore, sHiM, sScr = (S.alloc(n) for n in "d0 d1 d2 b0 b1 b2 o1 o2 o3 pend more him scr".split())
    sM = S.alloc("m", 8, 2); sGM = S.alloc("gm", 2); sT2 = S.alloc("t2", 2); sCn = S.alloc("cn", 4); sCu = S.alloc("cu", 4)
    vL, vWt, aX, aE, aI, cX, cE, cI, cN, cM, vDesc, vOFF, vDone, vSt, vOne = (V.alloc(n) for n in "l wt ax ae ai cx ce ci cn cm desc off done st one".split())
    T = V.alloc("T", 32); Z = V.alloc("Z", 32); Q = V.alloc("Q", 8); R = V.alloc("R", 8); P = V.alloc("P", 8)
    SEL = V.alloc("SEL", 16); MC = V.alloc("MC", 16); RAW = V.alloc("RAW", 32); DL = V.alloc("DL", 16); DH = V.alloc("DH", 16)
    M = V.alloc("M", 8); F = V.alloc("F", 4); X = V.alloc("X", 8); NID = V.alloc("NID", 4); t = V.alloc("t", 8); u = V.alloc("u", 8)
    D = [DL, DH]

    e("k2_kernel:")
    e("s_cmp_ge_u32 s2, 256\ns_cbranch_scc1 K2_END")
    e(f"s_load_dwordx16 s[4:19], s[0:1], 0\ns_load_dwordx4 {s(sOUT,4)}, s[0:1], 64\ns_load_dwordx2 {s(sWS,2)}, s[0:1], 80")
    e(f"v_and_b32 v{vL}, 63, v0\nv_lshrrev_b32 v{t}, 6, v0\nv_mov_b32 v{vOne}, 1")
    e(f"v_readfirstlane_b32 s{sW}, v{t}")
    e(f"v_mov_b32 v{vOFF}, 0\nv_mov_b32 v{vDone}, 0")
    e(f"s_lshr_b32 s{sT}, s{sW}, 1\ns_and_b32 s{sHF}, s{sW}, 1")
    e(f"s_mul_i32 s{sK}, s2, {NPW}\ns_sub_u32 s{sNV}, {N}, s{sK}\ns_min_u32 s{sNV}, s{sNV}, {NPW}\ns_lshl_b32 s{sNV}, s{sNV}, 8")
    e(f"s_lshl_b32 s{sA}, s{sW}, 15\ns_lshl_b32 s{sB_}, s2, 2\ns_add_u32 s{sA}, s{sA}, s{sB_}\ns_add_u32 s{sA}, s{sA}, {G.WS_OFF}")
    e(f"v_lshl_add_u32 v{t}, v{vL}, 10, s{sA}")
    e(f"s_mul_i32 s{sA}, s2, 588\nv_lshl_add_u32 v{t+1}, v0, 2, s{sA}")
    e(f"v_and_b32 v{t+2}, 127, v0\nv_lshlrev_b32 v{t+2}, 1, v{t+2}")
    e(f"s_lshl_b32 s{sA}, s{sHF}, 7\ns_add_u32 s{sA}, s{sA}, {256*256}\nv_and_b32 v{t+3}, 31, v{vL}\nv_lshl_add_u32 v{t+3}, v{t+3}, 1, s{sA}")
    e(f"v_lshlrev_b32 v{t+4}, 4, v0")
    e(f"v_lshrrev_b32 v{u}, 4, v{vL}\nv_and_b32 v{u+1}, 15, v{vL}")
    e(f"v_xor_b32 v{u+2}, s{sW}, v{u+1}\nv_lshlrev_b32 v{u+2}, 4, v{u+2}\nv_lshl_or_b32 v{u+2}, v{u}, 8, v{u+2}\nv_xor_b32 v{u+3}, 128, v{u+2}")
    e(f"v_lshlrev_b32 v{u+4}, 2, v{u}\nv_xor_b32 v{u+4}, v{u+4}, v{u+1}\nv_lshlrev_b32 v{u+4}, 4, v{u+4}\nv_lshl_or_b32 v{u+4}, v{u}, 8, v{u+4}")
    e(f"s_mov_b32 s{sO1}, 8192\ns_mov_b32 s{sO2}, 16384\ns_mov_b32 s{sO3}, 24576\ns_mov_b32 s{sHiM}, 0xffff0000")
    e(f"s_mov_b32 s{sBeta}, 0\ns_mov_b32 s{sRound}, 0")
    e(f"s_lshl_b32 s{sScr}, s{sW}, 10\ns_add_u32 s{sScr}, s{sScr}, {L_SCR}")
    e("s_waitcnt lgkmcnt(0)")
    e("s_mov_b32 exec_hi, 0")
    e(f"global_load_dword v{vOFF}, v{t}, {s(sWS,2)}")
    e("s_mov_b32 exec_hi, -1")
    srd(e, rPOS, P_POS, N * 6)
    e(f"buffer_load_dword v{T+26}, v{t+1}, {s(rPOS,4)}, 0 offen")
    e(f"global_load_ushort v{T+27}, v{t+2}, {s(P_WX,2)}")
    for bl in range(2):
        for k in range(5):
            e(f"global_load_ushort v{T+16+5*bl+k}, v{t+3}, {s(P_WE,2)} offset:{k*256+bl*64}")
    srd(e, rX, P_WH, 32768)
    for i in range(4):
        e(f"buffer_load_dwordx4 {v(T+4*i,4)}, v{t+4}, {s(rX,4)}, {['0', f's{sO1}', f's{sO2}', f's{sO3}'][i]} offen")
    e(f"s_lshl_b32 s{sK}, s{sK}, 8")
    srd(e, rH, P_H, f"s{sNV}", off=f"s{sK}")
    srd(e, rO, sOUT, f"s{sNV}", off=f"s{sK}")
    e(f"s_lshl_b32 s{sK}, s{sW}, 10")
    for i in range(4):
        if i == 3:
            e(f"s_cmp_lg_u32 s{sW}, 0\ns_cbranch_scc1 K2_NOH3")
        e(f"s_add_u32 s{sA}, s{sK}, {i*8192}\ns_add_u32 m0, s{sA}, {L_H}\ns_nop 0")
        e(f"buffer_load_dwordx4 v{u+3 if i&1 else u+2}, {s(rH,4)}, s{sA} offen lds")
    e("K2_NOH3:")
    srd(e, rX, P_WE, 32768)
    for i in range(4):
        e(f"s_add_u32 s{sA}, s{sK}, {i*8192}\ns_add_u32 m0, s{sA}, {L_WD}\ns_nop 0")
        e(f"buffer_load_dwordx4 v{u+4}, {s(rX,4)}, s{sA} offen lds")
    srd(e, rREC, sWS, 256 * CH * 12, off=G.WS_REC)
    e(f"s_lshl_b32 s{sA}, s{sHF}, 7\ns_add_u32 s{sA}, s{sA}, {G.WS_B-128}")
    srd(e, rB, sWS, "-1", off=f"s{sA}", w3="0x800000", stride=4)
    e(f"s_lshl_b32 s{sA}, s{sHF}, 14\ns_add_u32 s{sA}, s{sA}, {G.WS_WB}")
    srd(e, rX, sWS, 16384, off=f"s{sA}")
    e(f"v_lshrrev_b32 v{t}, 5, v{vL}\nv_and_b32 v{t+1}, 31, v{vL}")
    e(f"v_lshlrev_b32 v{cI}, 4, v{t}\nv_add_u32 v{cI}, {512+32}, v{cI}")
    e(f"v_bfe_u32 v{t+2}, v{vL}, 2, 1\nv_lshlrev_b32 v{cX}, 7, v{t+2}\nv_lshl_add_u32 v{cX}, v{t}, 6, v{cX}")
    e(f"v_bfe_u32 v{t+2}, v{vL}, 3, 1\nv_lshl_add_u32 v{cX}, v{t+2}, 4, v{cX}")
    e(f"v_bfe_u32 v{t+2}, v{vL}, 4, 1\nv_and_b32 v{t+3}, 3, v{vL}\nv_lshl_add_u32 v{t+2}, v{t+2}, 2, v{t+3}\nv_lshl_add_u32 v{cN}, v{t+2}, 4, 16")
    e(f"v_lshlrev_b32 v{cE}, 4, v{t+1}\nv_mov_b32 v{cM}, 0\nv_mov_b32 v{vWt}, 0")
    e("s_mov_b32 exec_hi, 0")
    e(f"v_mov_b32 v{cM}, 0xffff")
    e(f"v_and_b32 v{cE}, 13, v{t+1}\nv_lshlrev_b32 v{cE}, 4, v{cE}\nv_lshrrev_b32 v{t+2}, 4, v{t+1}\nv_lshl_add_u32 v{cE}, v{t+2}, 3, v{cE}")
    e(f"v_and_b32 v{t+2}, 2, v{t+1}\nv_lshl_add_u32 v{cE}, v{t+2}, 1, v{cE}\nv_add_u32 v{cE}, 512, v{cE}")
    e("s_mov_b32 exec_hi, -1")
    e(f"s_lshl_b32 s{sA}, s{sT}, 8\ns_lshl_b32 s{sB_}, s{sHF}, 7\ns_add_u32 s{sA}, s{sA}, s{sB_}")
    e(f"v_lshlrev_b32 v{vSt}, 2, v{t+1}\nv_lshl_add_u32 v{vSt}, v{t}, 12, v{vSt}\nv_add_u32 v{vSt}, s{sA}, v{vSt}")
    e(f"v_lshlrev_b32 v{t+2}, 2, v{t}\nv_sub_u32 v{t+2}, v{t+1}, v{t+2}\nv_mov_b32 v{t+3}, 0x3f80")
    for q in range(4):
        for m in range(4):
            e(f"v_cmp_eq_u32 vcc, {8*q+m}, v{t+2}\ns_nop 1\nv_cndmask_b32 v{SEL+4*q+m}, 0, v{t+3}, vcc")
    e(f"v_lshrrev_b32 v{t}, 3, v{vL}\nv_and_b32 v{t+1}, 7, v{vL}\nv_add_u32 v{t+1}, 1, v{t+1}\nv_cmp_eq_u32 vcc, v{t}, v{t+1}")
    e(f"v_lshlrev_b32 v{t+2}, 1, v{vL}\ns_nop 0\nv_cndmask_b32 v{t}, 0, v{t+3}, vcc\nds_write_b16 v{t+2}, v{t}")
    e(f"v_mov_b32 v{t}, 0\nv_min_u32 v{t+1}, 293, v0\nv_lshlrev_b32 v{t+1}, 2, v{t+1}\nds_write_b32 v{t+1}, v{t} offset:{L_PACC}")

    e("K2_ROUND:")
    for i in range(4):
        e(f"v_mov_b32 v{u+i}, 0")
    e(f"v_lshlrev_b32 v{t}, 4, v0")
    for i in range(7):
        e(f"ds_write_b128 v{t}, {v(u,4)} offset:{L_TILES+i*8192}")
    e(f"v_and_b32 v{t}, 0xfff, v{t}\nds_write_b128 v{t}, {v(u,4)} offset:{L_TILES+7*8192}")
    e(f"v_and_b32 v{t}, 0x70, v{t}\nds_write_b128 v{t}, {v(u,4)} offset:{L_CNT}")
    e(f"v_lshl_add_u32 v{t+7}, v{vL}, 4, s{sScr}\nds_write_b128 v{t+7}, {v(u,4)}")
    e("s_waitcnt vmcnt(23)")
    e(f"v_lshrrev_b32 v{t}, 16, v{vOFF}\nv_mov_b32 v{t+1}, v{t}")
    scan_dpp(e, "v_add_u32", t + 1, None, full=False)
    e(f"s_lshl_b32 s{sA}, s{sW}, 5\nv_add_u32 v{t+2}, s{sA}, v{vL}\nv_readlane_b32 s{sTot}, v{t+1}, 31")
    e(f"v_sub_u32 v{t+1}, v{t+1}, v{t}\nv_and_b32 v{t+3}, 0xffff, v{vOFF}")
    e(f"v_mul_u32_u24 v{t+2}, {CH}, v{t+2}\nv_add_u32 v{t+2}, v{t+2}, v{t+3}\nv_sub_u32 v{t+2}, v{t+2}, v{t+1}")
    e(f"v_sub_u32 v{t+1}, v{t+1}, s{sBeta} clamp")
    e(f"v_cmp_ne_u32 vcc, 0, v{t}\ns_mov_b32 s{sA}, 256\nv_cmp_gt_u32 {s(sT2,2)}, s{sA}, v{t+1}")
    e(f"v_lshl_add_u32 v{t+1}, v{t+1}, 2, s{sScr}")
    e(f"s_and_b64 exec, vcc, {s(sT2,2)}\nds_max_u32 v{t+1}, v{t+2}\ns_mov_b64 exec, -1")
    e(f"ds_read_b128 {v(u,4)}, v{t+7}\ns_waitcnt lgkmcnt(0)")
    e(f"v_max3_u32 v{t}, v{u}, v{u+1}, v{u+2}\nv_max_u32 v{t}, v{t}, v{u+3}")
    scan_dpp(e, "v_max_u32", t, None)
    e(f"v_mov_b32 v{t+1}, 0\ns_nop 1\nv_mov_b32_dpp v{t+1}, v{t} wave_shr:1 row_mask:0xf bank_mask:0xf")
    e(f"v_max_u32 v{u}, v{u}, v{t+1}")
    for i in range(3):
        e(f"v_max_u32 v{u+i+1}, v{u+i+1}, v{u+i}")
    e(f"ds_write_b128 v{t+7}, {v(u,4)}\nv_lshl_add_u32 v{t+6}, v{vL}, 2, s{sScr}")
    for i in range(4):
        e(f"ds_read_b32 v{u+4+i}, v{t+6} offset:{256*i}")
    e(f"v_add_u32 v{t}, s{sBeta}, v{vL}\nv_mov_b32 v{t+5}, -16")
    for i in range(4):
        e(f"v_add_u32 v{t+1}, {64*i}, v{t}\nv_and_b32 v{t+2}, {1<<i}, v{vDone}")
        e(f"v_cmp_gt_u32 vcc, s{sTot}, v{t+1}\nv_cmp_eq_u32 {s(sT2,2)}, 0, v{t+2}")
        e(f"s_waitcnt lgkmcnt({3-i})")
        e(f"s_and_b64 {s(sM+2*i,2)}, vcc, {s(sT2,2)}")
        e(f"v_add_u32 v{t+1}, v{t+1}, v{u+4+i}\nv_mul_u32_u24 v{t+1}, 12, v{t+1}")
        e(f"v_cndmask_b32 v{t+1}, v{t+5}, v{t+1}, {s(sM+2*i,2)}")
        e(f"buffer_load_dwordx3 {v(DL+4*i,3)}, v{t+1}, {s(rREC,4)}, 0 offen")
    e(f"s_cmp_lg_u32 s{sRound}, 0\ns_cbranch_scc1 K2_NOSTAGE")
    e("s_waitcnt vmcnt(4)")
    e(f"v_min_u32 v{t}, 147, v0\nv_lshlrev_b32 v{t}, 2, v{t}\nds_write_b32 v{t}, v{T+26} offset:{L_POSL}")
    e(f"v_and_b32 v{t}, 127, v0\nv_lshlrev_b32 v{t}, 2, v{t}\nv_lshlrev_b32 v{T+27}, 16, v{T+27}\nds_write_b32 v{t}, v{T+27} offset:{L_WX}")
    e(f"v_bfe_u32 v{t}, v0, 5, 1\ns_mov_b32 s{sA}, 0x02020202\nv_mul_lo_u32 v{t}, v{t}, s{sA}\nv_xor_b32 v{t}, 0x05040100, v{t}\nv_xor_b32 v{t+1}, s{sA}, v{t}")
    e(f"v_bfe_u32 v{t+2}, v0, 4, 1\nv_lshlrev_b32 v{t+2}, 3, v{t+2}\nv_xor_b32 v{t+2}, v{t+2}, v0\nv_lshlrev_b32 v{t+2}, 4, v{t+2}\nv_add_u32 v{t+2}, {L_WT}, v{t+2}")
    for i in range(4):
        d = T + 4 * i
        o = u + 4 * (i & 1)
        e(f"v_perm_b32 v{o}, v{d+1}, v{d}, v{t}\nv_perm_b32 v{o+1}, v{d+3}, v{d+2}, v{t}")
        e(f"v_perm_b32 v{o+2}, v{d+1}, v{d}, v{t+1}\nv_perm_b32 v{o+3}, v{d+3}, v{d+2}, v{t+1}")
        e(f"ds_write_b128 v{t+2}, {v(o,4)} offset:{8192*i}")
    e(f"s_mov_b32 s{sA}, {hex(G.LOG2E)}")
    for bl in range(2):
        w = T + 16 + 5 * bl
        for k in range(5):
            e(f"v_lshlrev_b32 v{w+k}, 16, v{w+k}\nv_mul_f32 v{w+k}, s{sA}, v{w+k}")
        e(f"v_cvt_pk_bf16_f32 v{P+4*bl}, v{w+1}, v{w+2}\nv_cvt_pk_bf16_f32 v{P+4*bl+1}, v{w+3}, v{w+4}")
        e(f"v_mov_b32 v{P+4*bl+2}, 0\nv_mov_b32 v{P+4*bl+3}, 0\nv_mov_b32 v{Q+4*bl+3}, v{w}")
    e("K2_NOSTAGE:")
    e("s_waitcnt lgkmcnt(0)\ns_barrier")
    PS, PD, aR, aW4, RK, LL = MC, MC + 8, X, X + 4, NID, F
    for i in range(4):
        w = DL + 4 * i + 2
        e(f"s_waitcnt vmcnt(3)")
        e(f"v_and_b32 v{w+1}, 0xffff, v{w}\nv_lshrrev_b32 v{LL+i}, 16, v{w}")
        e(f"v_mul_u32_u24 v{t}, 6, v{w+1}\nv_and_b32 v{t}, -4, v{t}")
        e(f"buffer_load_dwordx2 {v(PS+2*i,2)}, v{t}, {s(rPOS,4)}, 0 offen")
        e(f"v_and_b32 v{aR+i}, 15, v{LL+i}\nv_lshlrev_b32 v{t+1}, 2, v{aR+i}")
        e(f"v_mul_u32_u24 v{t+2}, 6, v{LL+i}\nv_and_b32 v{t+2}, -4, v{t+2}\nv_add_u32 v{t+2}, {L_POSL}, v{t+2}")
        e(f"s_mov_b64 exec, {s(sM+2*i,2)}\nds_add_rtn_u32 v{RK+i}, v{t+1}, v{vOne} offset:{L_CNT}\ns_mov_b64 exec, -1")
        e(f"ds_read2_b32 {v(PD+2*i,2)}, v{t+2} offset0:0 offset1:1")
    e(f"s_mov_b32 s{sA}, {CAP}\ns_mov_b32 s{sB_}, {TB}\nv_mov_b32 v{t+7}, {L_TILES}\nv_mov_b32 v{t+6}, 0")
    for i in range(4):
        w = DL + 4 * i + 2
        if i == 0: e("s_waitcnt lgkmcnt(0)")
        e(f"v_cmp_gt_u32 vcc, s{sA}, v{RK+i}")
        e(f"v_lshrrev_b32 v{t}, 5, v{RK+i}\nv_mad_u32_u24 v{t}, v{aR+i}, 5, v{t}\nv_mad_u32_u24 v{t}, v{t}, s{sB_}, v{t+7}")
        e(f"s_andn2_b64 exec, {s(sM+2*i,2)}, vcc\nds_write_b32 v{t+6}, v{vOne} offset:{L_FLAG}")
        e(f"s_and_b64 {s(sM+2*i,2)}, {s(sM+2*i,2)}, vcc\ns_mov_b64 exec, {s(sM+2*i,2)}")
        e(f"v_or_b32 v{vDone}, {1<<i}, v{vDone}")
        e(f"v_and_b32 v{t+1}, 31, v{RK+i}\nv_lshl_add_u32 v{aR+i}, v{t+1}, 4, v{t}")
        e(f"v_lshrrev_b32 v{t+2}, 3, v{t+1}\nv_lshl_add_u32 v{t+2}, v{t+2}, 6, v{t}\nv_and_b32 v{t+3}, 7, v{t+1}\nv_lshl_add_u32 v{t+2}, v{t+3}, 2, v{t+2}")
        e(f"v_and_b32 v{t+3}, 4, v{t+1}\nv_xor_b32 v{t+3}, 4, v{t+3}\nv_lshlrev_b32 v{t+3}, 5, v{t+3}\nv_lshl_or_b32 v{t+3}, v{w+1}, 8, v{t+3}")
        e(f"ds_write_b32 v{t+2}, v{t+3} offset:{512+32}")
        e(f"v_and_b32 v{t+2}, 13, v{t+1}\nv_lshl_add_u32 v{t}, v{t+2}, 4, v{t}\nv_lshrrev_b32 v{t+2}, 4, v{t+1}\nv_lshl_add_u32 v{t}, v{t+2}, 3, v{t}")
        e(f"v_and_b32 v{t+2}, 2, v{t+1}\nv_lshl_add_u32 v{aW4+i}, v{t+2}, 1, v{t}")
        e("s_mov_b64 exec, -1")
    e(f"s_add_u32 s{sA}, s{sBeta}, 256\ns_cmp_le_u32 s{sTot}, s{sA}\ns_cbranch_scc1 K2_NOMORE")
    e(f"ds_write_b32 v{t+6}, v{vOne} offset:{L_FLAG+4}")
    e("K2_NOMORE:")
    e("s_waitcnt lgkmcnt(0)\ns_barrier")
    e(f"v_and_b32 v{t}, 31, v{vL}\nv_lshlrev_b32 v{t}, 2, v{t}\nds_read_b32 v{t}, v{t} offset:{L_CNT}\ns_waitcnt lgkmcnt(0)")
    e(f"v_readlane_b32 s{sPend}, v{t}, 16\nv_readlane_b32 s{sMore}, v{t}, 17")
    for g in range(4):
        e(f"s_add_u32 s{sA}, s{sT}, {4*g}\nv_readlane_b32 s{sCn+g}, v{t}, s{sA}")
    for g in range(4):
        e(f"s_min_u32 s{sCn+g}, s{sCn+g}, {CAP}\ns_add_u32 s{sA}, s{sCn+g}, 31\ns_lshr_b32 s{sA}, s{sA}, 5\ns_max_u32 s{sA}, s{sA}, 1")
        e(f"s_add_u32 s{sCu+g}, s{sA}, " + ("0" if g == 0 else f"s{sCu+g-1}"))
    e(f"s_mov_b32 s{sNT}, s{sCu+3}\ns_sub_u32 s{sA}, s{sNT}, 1\nv_min_u32 v{t}, s{sA}, v{vL}")
    e(f"v_mov_b32 v{t+1}, v{t}\nv_mov_b32 v{t+2}, s{sCn}\nv_mov_b32 v{t+3}, 0")
    for g in range(1, 4):
        e(f"v_cmpx_le_u32 vcc, s{sCu+g-1}, v{t}")
        e(f"v_subrev_u32 v{t+1}, s{sCu+g-1}, v{t}\nv_mov_b32 v{t+2}, s{sCn+g}\nv_mov_b32 v{t+3}, {20*g}")
    e("s_mov_b64 exec, -1")
    e(f"s_mul_i32 s{sA}, s{sT}, 5\nv_add3_u32 v{t+3}, v{t+3}, v{t+1}, s{sA}\nv_mul_u32_u24 v{t+3}, {TB}, v{t+3}\nv_add_u32 v{vDesc}, {L_TILES}, v{t+3}")
    e(f"v_lshlrev_b32 v{t+4}, 5, v{t+1}\nv_sub_u32 v{t+2}, v{t+2}, v{t+4}")
    e(f"v_add_u32 v{t+4}, 7, v{t+2}\nv_lshrrev_b32 v{t+4}, 3, v{t+4}\nv_med3_u32 v{t+4}, v{t+4}, 1, 4\nv_lshl_or_b32 v{vDesc}, v{t+4}, 16, v{vDesc}")
    e(f"v_cmpx_eq_u32 vcc, 0, v{t+1}\nv_or_b32 v{vDesc}, 0x100000, v{vDesc}\ns_mov_b64 exec, -1")
    e(f"v_cmpx_ge_u32 vcc, 32, v{t+2}\nv_or_b32 v{vDesc}, 0x200000, v{vDesc}\ns_mov_b64 exec, -1\ns_nop 3")
    e(f"v_readlane_b32 s{sD0}, v{vDesc}, 0\nv_readlane_b32 s{sD1}, v{vDesc}, 1")
    e(f"s_and_b32 s{sB0}, s{sD0}, 0xffff\ns_and_b32 s{sB1}, s{sD1}, 0xffff")
    def idx_reads(Sx):
        for q in range(4):
            e(f"ds_read_b128 {v(RAW+16*Sx+4*q,4)}, v{aI} offset:{64*q}")
    def row_loads(Sx, lo=0, hi=16):
        for r in range(lo, hi):
            if G.SAFE: e(f"v_and_b32 v{RAW+16*Sx+r}, 0x7fffff, v{RAW+16*Sx+r}")
            e(f"buffer_load_dword v{RAW+16*Sx+r}, v{RAW+16*Sx+r}, {s(rB,4)}, 0 offen")
    e(f"v_add_u32 v{aI}, s{sB0}, v{cI}"); idx_reads(0)
    e(f"v_add_u32 v{aI}, s{sB1}, v{cI}"); idx_reads(1)
    e("s_waitcnt lgkmcnt(4)"); row_loads(0)
    e("s_waitcnt lgkmcnt(0)"); row_loads(1)
    e(f"s_cmp_lg_u32 s{sRound}, 0\ns_cbranch_scc1 K2_NOGEMM")
    def h_addr(dst, lreg):
        e(f"v_add_u32 v{lreg}, s{sT}, v{lreg}\nv_min_u32 v{lreg}, 99, v{lreg}")
        e(f"v_bfe_u32 v{t+1}, v{lreg}, 2, 4\nv_lshrrev_b32 v{t+2}, 5, v{vL}\nv_xor_b32 v{t+1}, v{t+1}, v{t+2}\nv_lshlrev_b32 v{t+1}, 4, v{t+1}")
        e(f"v_lshl_add_u32 v{dst}, v{lreg}, 8, v{t+1}\nv_add_u32 v{dst}, {L_H}, v{dst}")
    e(f"v_and_b32 v{t}, 3, v{vL}\nv_lshlrev_b32 v{t}, 4, v{t}\nv_bfe_u32 v{t+1}, v{vL}, 3, 1\nv_lshl_add_u32 v{t}, v{t+1}, 6, v{t}")
    e(f"v_bfe_u32 v{t+1}, v{vL}, 2, 1\nv_lshl_add_u32 v{t}, v{t+1}, 3, v{t}\nv_bfe_u32 v{t+1}, v{vL}, 4, 1\nv_lshl_add_u32 v{t}, v{t+1}, 2, v{t}")
    h_addr(u, t)
    tr_addr(e, u + 2, vL, sHF, L_WD, t, t + 1, t + 2, sA)
    gemm(e, T, u, u + 2, M, DH, t + 3)
    e(f"v_and_b32 v{t}, 31, v{vL}\nv_lshlrev_b32 v{t}, 2, v{t}")
    h_addr(u, t)
    e(f"v_bfe_u32 v{t}, v{vL}, 2, 2\nv_lshlrev_b32 v{t+1}, 8, v{t}\nv_lshrrev_b32 v{t+2}, 5, v{vL}\nv_lshl_add_u32 v{t+1}, v{t+2}, 11, v{t+1}")
    e(f"v_and_b32 v{t+2}, 1, v{t}\nv_xor_b32 v{t+2}, s{sHF}, v{t+2}\nv_lshl_add_u32 v{t+1}, v{t+2}, 7, v{t+1}")
    e(f"v_bfe_u32 v{t+2}, v{vL}, 4, 1\nv_lshl_add_u32 v{t+1}, v{t+2}, 6, v{t+1}\nv_and_b32 v{t+2}, 3, v{vL}\nv_lshl_add_u32 v{t+1}, v{t+2}, 4, v{t+1}")
    e(f"v_lshrrev_b32 v{t+2}, 1, v{t}\nv_lshl_add_u32 v{t+1}, v{t+2}, 3, v{t+1}\nv_xor_b32 v{t+2}, 8, v{t+1}")
    e(f"v_add_u32 v{u+2}, {L_WT}, v{t+1}\nv_add_u32 v{u+3}, {L_WT}, v{t+2}")
    gemm(e, Z, u, u + 2, M, DH, t + 3)
    e(f"s_mov_b32 s{sA}, {hex(G.LOG2E)}")
    for bl in range(2):
        a = T + 16 * bl
        for r in range(16):
            if r & 7 != 7:
                e(f"v_mul_f32 v{a+r}, s{sA}, v{a+r}")
        for m in range(3):
            e(f"v_cvt_pk_bf16_f32 v{R+4*bl+m}, v{a+8+2*m}, v{a+8+2*m+1}\nv_cvt_pk_bf16_f32 v{Q+4*bl+m}, v{a+2*m}, v{a+2*m+1}")
        e(f"v_cvt_pk_bf16_f32 v{R+4*bl+3}, v{a+14}, v{Q+4*bl+3}\nv_cvt_pk_bf16_f32 v{Q+4*bl+3}, v{a+6}, v{Q+4*bl+3}")
    for r in range(32):
        e(f"v_mul_f32 v{Z+r}, s{sA}, v{Z+r}")
    e("K2_NOGEMM:")
    e("s_waitcnt vmcnt(32)")
    e(f"v_mov_b32 v{u+7}, 1.0")
    for i in range(4):
        w = DL + 4 * i + 2
        ps, pd = PS + 2 * i, PD + 2 * i
        e(f"v_and_b32 v{t}, 1, v{w+1}\nv_lshlrev_b32 v{t}, 4, v{t}\nv_lshrrev_b64 {v(ps,2)}, v{t}, {v(ps,2)}")
        e(f"v_and_b32 v{t}, 1, v{LL+i}\nv_lshlrev_b32 v{t}, 4, v{t}\nv_lshrrev_b64 {v(pd,2)}, v{t}, {v(pd,2)}")
        e(f"v_lshlrev_b32 v{t}, 16, v{pd}\nv_lshlrev_b32 v{t+1}, 16, v{ps}\nv_sub_f32 v{t}, v{t}, v{t+1}")
        e(f"v_and_b32 v{t+1}, s{sHiM}, v{pd}\nv_and_b32 v{t+2}, s{sHiM}, v{ps}\nv_sub_f32 v{t+1}, v{t+1}, v{t+2}")
        e(f"v_lshlrev_b32 v{t+2}, 16, v{pd+1}\nv_lshlrev_b32 v{t+3}, 16, v{ps+1}\nv_sub_f32 v{t+2}, v{t+2}, v{t+3}")
        e(f"v_cvt_pk_bf16_f32 v{u}, v{u+7}, v{t}\nv_cvt_pk_bf16_f32 v{u+1}, v{t+1}, v{t+2}")
        e(f"v_and_b32 v{t}, s{sHiM}, v{u}\nv_lshlrev_b32 v{t+1}, 16, v{u+1}\nv_and_b32 v{t+2}, s{sHiM}, v{u+1}")
        e(f"v_mul_f32 v{t}, v{t}, v{t}\nv_mul_f32 v{t+1}, v{t+1}, v{t+1}\nv_mul_f32 v{t+2}, v{t+2}, v{t+2}")
        e(f"v_cvt_pk_bf16_f32 v{t}, v{t}, v{t}\nv_cvt_pk_bf16_f32 v{t+1}, v{t+1}, v{t+2}")
        e(f"v_and_b32 v{t}, s{sHiM}, v{t}\nv_and_b32 v{t+2}, s{sHiM}, v{t+1}\nv_lshlrev_b32 v{t+1}, 16, v{t+1}")
        e(f"v_add_f32 v{t}, v{t}, v{t+1}\nv_add_f32 v{t}, v{t}, v{t+2}\nv_cvt_pk_bf16_f32 v{t}, v{t}, v{t}")
        e(f"v_and_b32 v{t+1}, 0x70, v{LL+i}\nv_add_u32 v{t+1}, 16, v{t+1}\nv_and_or_b32 v{t}, v{t}, s{sHiM}, v{t+1}")
        e(f"v_and_b32 v{t+1}, 8, v{LL+i}\nv_cmp_ne_u32 vcc, 0, v{t+1}\nv_and_b32 v{t+1}, 4, v{LL+i}\nv_lshlrev_b32 v{t+1}, 2, v{t+1}")
        e(f"v_cndmask_b32 v{w}, v{u}, v{u+1}, vcc\nv_cndmask_b32 v{w+1}, v{u+1}, v{u}, vcc")
        e(f"v_alignbit_b32 v{w}, v{w}, v{w}, v{t+1}\nv_alignbit_b32 v{w+1}, v{w+1}, v{w+1}, v{t+1}")
        e(f"s_mov_b64 exec, {s(sM+2*i,2)}")
        e(f"ds_write_b128 v{aR+i}, {v(DL+4*i,4)}\nds_write_b32 v{aW4+i}, v{t} offset:512")
        e("s_mov_b64 exec, -1")
    def gswitch(g):
        src = Q if g in (0, 2) else R
        if g < 2:
            e("s_mov_b32 exec_hi, 0")
            for r in range(8): e(f"v_mov_b32 v{P+r}, v{src+r}")
            e("s_mov_b32 exec_hi, -1")
        else:
            for r in range(8): e(f"v_mov_b32 v{t+r}, v{src+r}")
            for r in range(8): e(f"v_permlane32_swap_b32 v{t+r}, v{P+r}")
    gswitch(0)
    e(f"s_mov_b32 s{sGQ}, 0\ns_mov_b32 s{sGM}, 0x11111111\ns_mov_b32 s{sGM+1}, 0x11111111\ns_mov_b32 s{sI}, 2")
    e("s_waitcnt lgkmcnt(0)\ns_barrier")
    e(f"v_add_u32 v{aE}, s{sB0}, v{cE}\ns_mov_b32 exec_hi, 0\nds_read_b32 v{vWt}, v{aE}\ns_mov_b32 exec_hi, -1\ns_waitcnt lgkmcnt(0)")
    e(f"v_bfi_b32 v{aE}, v{cM}, v{vWt}, v{aE}\nds_read_b128 {v(F,4)}, v{aE}\ns_waitcnt lgkmcnt(0)")
    e(f"v_bfi_b32 v{F+3}, s{sHiM}, v{vWt}, v{F+3}")

    def silu8(q):
        regs = [DH + 4 * q + m for m in range(4)] + [DL + 4 * q + m for m in range(4)]
        for k, r in enumerate(regs): e(f"v_exp_f32 v{t+k}, -v{r}")
        for k in range(0, 8, 2): e(f"v_pk_add_f32 {v(t+k,2)}, {v(t+k,2)}, 1.0 op_sel_hi:[1,0]")
        for k in range(8): e(f"v_rcp_f32 v{t+k}, v{t+k}")
        for k in range(0, 8, 2): e(f"v_pk_mul_f32 {v(regs[k],2)}, {v(regs[k],2)}, {v(t+k,2)}")
    def pack(st):
        for bl in range(2):
            for m in range(4):
                e(f"v_cvt_pk_bf16_f32 v{M+4*bl+m}, v{D[bl]+8*st+m}, v{D[bl]+8*st+4+m}")
    def stage2(st, zero=False):
        for bl in range(2):
            c = "0" if zero else v(T + 16 * bl, 16)
            e(f"{MFMA} {v(T+16*bl,16)}, {v(M+4*bl,4)}, {v(X+4*st,4)}, {c}")

    for Sx in range(2):
        raw = RAW + 16 * Sx
        e(f"K2_TILE{Sx}:")
        e(f"v_readlane_b32 s{sD2}, v{vDesc}, s{sI}")
        e(f"v_add_u32 v{aX}, s{sB0}, v{cX}\nds_read_b128 {v(NID,4)}, v{aX} offset:512")
        e(f"s_and_b32 s{sB2}, s{sD2}, 0xffff\ns_bfe_u32 s{sNQ}, s{sD0}, 0x30010")
        e(f"v_add_u32 v{aE}, s{sB1}, v{cE}\nv_add_u32 v{aI}, s{sB2}, v{cI}")
        e("s_waitcnt vmcnt(16)")
        e(f"{MFMA} {v(DL,16)}, {v(F,4)}, {v(P,4)}, 0")
        for q in range(4):
            e(f"{MFMA} {v(DL,16)}, {v(SEL+4*q,4)}, {v(raw+4*q,4)}, {v(DL,16)}")
        e(f"{MFMA} {v(DH,16)}, {v(F,4)}, {v(P+4,4)}, {v(raw,16)}")
        e(f"s_mov_b32 exec_hi, 0\nds_read_b32 v{vWt}, v{aE}\ns_mov_b32 exec_hi, -1")
        e("s_waitcnt lgkmcnt(1)")
        for k in range(4):
            e(f"v_xor_b32_sdwa v{aX}, v{NID+k}, v{cN} dst_sel:WORD_1 dst_unused:UNUSED_PRESERVE src0_sel:WORD_0 src1_sel:WORD_0")
            e(f"ds_read_b64_tr_b16 {v(X+2*k,2)}, v{aX} offset:{8+256*(k>>1)+32*(k&1)}")
        idx_reads(Sx)
        e("s_waitcnt lgkmcnt(8)")
        e(f"v_bfi_b32 v{aE}, v{cM}, v{vWt}, v{aE}\nds_read_b128 {v(F,4)}, v{aE}")
        e("s_waitcnt lgkmcnt(1)")
        row_loads(Sx)
        silu8(0)
        e("s_waitcnt lgkmcnt(0)")
        e(f"v_bfi_b32 v{F+3}, s{sHiM}, v{vWt}, v{F+3}")
        e(f"s_cmp_lt_u32 s{sNQ}, 2\ns_cbranch_scc1 K2_P0_{Sx}")
        silu8(1)
        e(f"K2_P0_{Sx}:")
        pack(0)
        e(f"s_bitcmp1_b32 s{sD0}, 20\ns_cbranch_scc1 K2_FIRST_{Sx}")
        stage2(0)
        e(f"s_branch K2_S1_{Sx}")
        e(f"K2_FIRST_{Sx}:")
        stage2(0, True)
        e(f"K2_S1_{Sx}:")
        e(f"s_cmp_lt_u32 s{sNQ}, 3\ns_cbranch_scc1 K2_DONE_{Sx}")
        silu8(2)
        e(f"s_cmp_lt_u32 s{sNQ}, 4\ns_cbranch_scc1 K2_P1_{Sx}")
        silu8(3)
        e(f"K2_P1_{Sx}:")
        pack(1)
        e("s_nop 1")
        stage2(1)
        e(f"K2_DONE_{Sx}:")
        e(f"s_bitcmp0_b32 s{sD0}, 21\ns_cbranch_scc1 K2_NOFLUSH_{Sx}")
        e(f"s_lshl_b32 s{sA}, s{sHF}, 8\nv_lshrrev_b32 v{u}, 5, v{vL}\nv_lshl_add_u32 v{u}, v{u}, 4, s{sA}")
        for k in range(8):
            e(f"ds_read_b128 {v(DL+4*k,4)}, v{u} offset:{L_WX+32*k}")
        e(f"s_lshl_b32 s{sA}, s{sGQ}, 2\ns_add_u32 s{sA}, s{sA}, s{sT}")
        e(f"v_bfe_u32 v{u+1}, v{vL}, 2, 3\nv_lshl_add_u32 v{u+1}, v{u+1}, 4, s{sA}\nv_cmp_gt_u32 vcc, {NPW}, v{u+1}")
        e(f"v_and_b32 v{u+2}, 3, v{vL}\nv_xor_b32 v{u+2}, s{sGQ}, v{u+2}\nv_mad_u32_u24 v{u+1}, v{u+1}, 3, v{u+2}\nv_lshlrev_b32 v{u+1}, 2, v{u+1}")
        e(f"s_mov_b64 exec, {s(sGM,2)}")
        for k in range(16):
            e(f"v_cvt_pk_bf16_f32 v{MC+k}, v{T+2*k}, v{T+2*k+1}")
        e(f"s_andn2_b64 exec, vcc, {s(sGM,2)}")
        e("s_waitcnt lgkmcnt(0)")
        for k in range(16):
            acc = u + 4 + 2 * (k & 1)
            if k < 2: e(f"v_pk_mul_f32 {v(acc,2)}, {v(T+2*k,2)}, {v(DL+2*k,2)}")
            else: e(f"v_pk_fma_f32 {v(acc,2)}, {v(T+2*k,2)}, {v(DL+2*k,2)}, {v(acc,2)}")
        e(f"v_pk_add_f32 {v(u+4,2)}, {v(u+4,2)}, {v(u+6,2)}\nv_add_f32 v{u+4}, v{u+4}, v{u+5}\nv_mul_f32 v{u+4}, {hex(G.LN2)}, v{u+4}")
        e(f"ds_add_f32 v{u+1}, v{u+4} offset:{L_PACC-4}")
        e("s_mov_b64 exec, -1")
        e(f"s_add_u32 s{sGQ}, s{sGQ}, 1\ns_lshl_b64 {s(sGM,2)}, {s(sGM,2)}, 1")
        e(f"s_cmp_eq_u32 s{sGQ}, 4\ns_cbranch_scc1 K2_MAINEND")
        for g in (1, 2):
            e(f"s_cmp_lg_u32 s{sGQ}, {g}\ns_cbranch_scc1 K2_G{g}_{Sx}")
            gswitch(g)
            e(f"s_branch K2_NOFLUSH_{Sx}\nK2_G{g}_{Sx}:")
        gswitch(3)
        e(f"K2_NOFLUSH_{Sx}:")
        e(f"s_mov_b32 s{sD0}, s{sD1}\ns_mov_b32 s{sD1}, s{sD2}\ns_mov_b32 s{sB0}, s{sB1}\ns_mov_b32 s{sB1}, s{sB2}\ns_add_u32 s{sI}, s{sI}, 1")
        if Sx == 1: e("s_branch K2_TILE0")
    e("K2_MAINEND:")
    WB = RAW
    assert DL == RAW + 32 and DH == RAW + 48
    e(f"v_lshlrev_b32 v{u}, 4, v{vL}\ns_waitcnt vmcnt(0)")
    e(f"s_movk_i32 s{sA}, 4096\ns_movk_i32 s{sB_}, 12288")
    for k in range(16):
        e(f"buffer_load_dwordx4 {v(WB+4*k,4)}, v{u}, {s(rX,4)}, {['0', f's{sA}', f's{sO1}', f's{sB_}'][k>>2]} offen offset:{(k&3)*1024}")
    for r in range(13):
        e(f"buffer_load_dword v{T+16+r}, v{vSt}, {s(rH,4)}, {['0', f's{sO1}', f's{sO2}', f's{sO3}'][r>>2]} offen offset:{(r&3)*1024}")
    e(f"s_lshl_b32 s{sA}, s{sW}, 12\nv_add_u32 v{u}, s{sA}, v{u}\nv_xor_b32 v{u+1}, 4096, v{u}")
    e("s_waitcnt lgkmcnt(0)\ns_barrier")
    for k in range(4):
        e(f"ds_write_b128 v{u}, {v(MC+4*k,4)} offset:{L_TILES+1024*k}")
    e("s_waitcnt lgkmcnt(0)\ns_barrier")
    for k in range(4):
        e(f"ds_read_b128 {v(T+4*k,4)}, v{u+1} offset:{L_TILES+1024*k}")
    e(f"s_cmp_eq_u32 s{sHF}, 0\ns_waitcnt vmcnt(13) lgkmcnt(0)\ns_cbranch_scc0 K2_FIN1")
    for hf in range(2):
        if hf: e("K2_FIN1:")
        for ks in range(8):
            a = (MC if (ks >> 2) == hf else T) + 4 * (ks & 3)
            for par in range(2):
                e(f"{MFMA} {v(Z+16*par,16)}, {v(a,4)}, {v(WB+32*par+4*ks,4)}, {v(Z+16*par,16)}")
        if not hf: e("s_branch K2_FIN2")
    e("K2_FIN2:")
    e(f"s_or_b32 s{sA}, s{sPend}, s{sMore}\ns_cmp_eq_u32 s{sA}, 0\ns_cbranch_scc1 K2_FINAL")
    e(f"s_add_u32 s{sRound}, s{sRound}, 1\ns_cmp_lg_u32 s{sPend}, 0\ns_cbranch_scc1 K2_AGAIN")
    e(f"s_add_u32 s{sBeta}, s{sBeta}, 256\nv_mov_b32 v{vDone}, 0")
    e("K2_AGAIN:\ns_waitcnt vmcnt(0) lgkmcnt(0)\ns_barrier\ns_branch K2_ROUND")
    e("K2_FINAL:")
    e(f"v_min_u32 v{u}, 146, v0\nv_lshlrev_b32 v{u+1}, 3, v{u}\nv_lshlrev_b32 v{u}, 2, v{u}")
    e(f"ds_read_b64 {v(u+2,2)}, v{u+1} offset:{L_PACC}\nds_read_b32 v{u+4}, v{u} offset:{L_POSL}")
    e(f"s_mul_i32 s{sA}, s2, 588")
    srd(e, rPOS, sOUT, N * 6, off=N * 256)
    e("s_waitcnt lgkmcnt(0)")
    e(f"v_lshlrev_b32 v{u+5}, 16, v{u+4}\nv_and_b32 v{u+4}, s{sHiM}, v{u+4}\nv_add_f32 v{u+2}, v{u+2}, v{u+5}\nv_add_f32 v{u+3}, v{u+3}, v{u+4}")
    e(f"v_cvt_pk_bf16_f32 v{u+2}, v{u+2}, v{u+3}\nv_add_u32 v{u}, s{sA}, v{u}")
    e(f"s_cmp_gt_u32 s{sW}, 2\ns_cbranch_scc1 K2_NOPOS")
    e(f"buffer_store_dword v{u+2}, v{u}, {s(rPOS,4)}, 0 offen")
    e("K2_NOPOS:")
    e(f"s_mov_b32 s{sA}, {hex(G.LN2)}\ns_waitcnt vmcnt(1)")
    for r0 in range(0, 13, 4):
        rs = list(range(r0, min(r0 + 4, 13)))
        regs = [Z + r for r in rs] + [Z + 16 + r for r in rs]
        n = len(regs)
        for k, r in enumerate(regs): e(f"v_exp_f32 v{t+k}, -v{r}")
        e("s_nop 0")
        for k in range(n): e(f"v_add_f32 v{t+k}, 1.0, v{t+k}")
        for k in range(n): e(f"v_rcp_f32 v{t+k}, v{t+k}")
        e("s_nop 0")
        for k, r in enumerate(regs): e(f"v_mul_f32 v{r}, v{r}, v{t+k}")
        if r0 == 12: e("s_waitcnt vmcnt(12)")
        for r in rs:
            h = T + 16 + r
            e(f"v_lshlrev_b32 v{t}, 16, v{h}\nv_and_b32 v{h}, s{sHiM}, v{h}")
            e(f"v_fmac_f32 v{t}, s{sA}, v{Z+r}\nv_fmac_f32 v{h}, s{sA}, v{Z+16+r}")
            e(f"v_cvt_pk_bf16_f32 v{h}, v{t}, v{h}")
            e(f"buffer_store_dword v{h}, v{vSt}, {s(rO,4)}, {['0', f's{sO1}', f's{sO2}', f's{sO3}'][r>>2]} offen offset:{(r&3)*1024}")
    e("K2_END:\ns_endpgm")
    return V.hi, S.hi, lds
```

```python
import sys, os
SAFE = int(os.environ.get("SAFE", "0"))
from asmlib import *

N, E, NPW, CH = 25000, 400000, 98, 1568
WS_B, WS_REC, WS_OFF, WS_WB = 256, 0x680000, 0xB80000, 0xBC0000
LOG2E, LN2 = 0x3fb8aa3b, 0x3f317218
MFMA = "v_mfma_f32_32x32x16_bf16"
HDR = open("standalone__cheap_equivariant_egnn__graph.s.ref").read().split("; Override launch")[0]

def kd(name, nv, ns):
    return f""".amdhsa_kernel {name}
.amdhsa_next_free_vgpr {nv}
.amdhsa_next_free_sgpr {ns}
.amdhsa_accum_offset {(nv+3)//4*4}
.amdhsa_group_segment_fixed_size 0
.amdhsa_kernarg_size 88
.amdhsa_user_sgpr_count 2
.amdhsa_user_sgpr_kernarg_segment_ptr 1
.amdhsa_system_sgpr_workgroup_id_x 1
.amdhsa_float_denorm_mode_32 3
.end_amdhsa_kernel"""

def srd(e, d, base, nrec, off=None, w3="0x20000", stride=0):
    if off is None:
        e(f"s_mov_b32 s{d}, s{base}")
        e(f"s_and_b32 s{d+1}, s{base+1}, 0xffff")
    else:
        e(f"s_add_u32 s{d}, s{base}, {off}")
        e(f"s_addc_u32 s{d+1}, s{base+1}, 0")
        e(f"s_and_b32 s{d+1}, s{d+1}, 0xffff")
    if stride:
        e(f"s_or_b32 s{d+1}, s{d+1}, {hex(stride << 16)}")
    e(f"s_mov_b32 s{d+2}, {nrec}")
    e(f"s_mov_b32 s{d+3}, {w3}")

def scan_dpp(e, op, r, t, full=True):
    for sh in (1, 2, 4, 8):
        e("s_nop 1")
        e(f"{op}_dpp v{r}, v{r}, v{r} row_shr:{sh} row_mask:0xf bank_mask:0xf bound_ctrl:1")
    e("s_nop 1")
    e(f"{op}_dpp v{r}, v{r}, v{r} row_bcast:15 row_mask:0xa bank_mask:0xf")
    if full:
        e("s_nop 1")
        e(f"{op}_dpp v{r}, v{r}, v{r} row_bcast:31 row_mask:0xc bank_mask:0xf")

P_H, P_POS, P_EA, P_SRC, P_DST, P_WE, P_WX, P_WH = 4, 6, 8, 10, 12, 14, 16, 18

def k1(e):
    L_H, L_W, L_HIST, L_BASE, L_STAGE = 0, 32768, 65536, 66560, 67584
    lds = L_STAGE + CH * 12
    S = Regs("s", 20, 100); V = Regs("v", 1, 128)
    sWS = S.alloc("ws", 2)
    rDST, rSRC, rEA, rH, rB, rREC = (S.alloc(n, 4) for n in ("dst", "src", "ea", "h", "b", "rec"))
    sW, sT, sHF, sA, sB_, sNV, sK = (S.alloc(n) for n in "w t hf a b nv k".split())
    sVal = S.alloc("val", 2); sWs_ = S.alloc("wes", 2); sOffp = S.alloc("offp", 2)
    sO1, sO2, sO3, sC = (S.alloc(n) for n in "o1 o2 o3 c".split())
    vL, vU, vO16, vO32, vT0, vT1, vT2, vT3, vH0, vH1, vWo, vOne = (V.alloc(n) for n in "l u o16 o32 t0 t1 t2 t3 h0 h1 wo one".split())
    vD = V.alloc("d", 4); vS = V.alloc("s", 4); vEA = V.alloc("ea", 8)
    vQ = V.alloc("q", 4); vR = V.alloc("r", 4); vC = V.alloc("c", 4); vP = V.alloc("p", 4)
    vWb = V.alloc("wb", 2); vWbA = V.alloc("wba")
    vAcc = V.alloc("acc", 32); vHA = V.alloc("ha", 8); vWf = V.alloc("wf", 16)
    vAW = V.alloc("aw", 2); vAH = V.alloc("ah"); vSt = V.alloc("st")

    e("k1_kernel:")
    e("s_cmp_ge_u32 s2, 256\ns_cbranch_scc1 K1_END")
    e(f"s_load_dwordx16 s[4:19], s[0:1], 0\ns_load_dwordx2 {s(sWS,2)}, s[0:1], 80")
    e(f"v_and_b32 v{vL}, 63, v0\nv_lshrrev_b32 v{vT0}, 6, v0\nv_mov_b32 v{vOne}, 1")
    e(f"v_readfirstlane_b32 s{sW}, v{vT0}")
    e(f"v_mov_b32 v{vT1}, 0\nv_lshlrev_b32 v{vT2}, 2, v0\nv_and_b32 v{vT2}, 0x3ff, v{vT2}")
    e(f"v_add_u32 v{vT2}, {L_HIST}, v{vT2}\nds_write_b32 v{vT2}, v{vT1}")
    e(f"s_mul_i32 s{sA}, s{sW}, 49\ns_mul_i32 s{sB_}, s2, 392\ns_add_u32 s{sA}, s{sA}, s{sB_}")
    e(f"v_add_u32 v{vU}, s{sA}, v{vL}\nv_lshlrev_b32 v{vO16}, 4, v{vU}\nv_lshlrev_b32 v{vO32}, 5, v{vU}")
    e(f"s_lshr_b32 s{sT}, s{sW}, 1\ns_and_b32 s{sHF}, s{sW}, 1")
    e(f"s_mul_i32 s{sA}, s2, {NPW}\ns_sub_u32 s{sNV}, {N}, s{sA}\ns_min_u32 s{sNV}, s{sNV}, {NPW}\ns_lshl_b32 s{sNV}, s{sNV}, 8")
    e(f"s_lshl_b32 s{sA}, s{sA}, 8")
    e(f"v_lshrrev_b32 v{vT0}, 4, v{vL}\nv_and_b32 v{vT1}, 15, v{vL}")
    e(f"v_xor_b32 v{vH0}, s{sW}, v{vT1}\nv_lshlrev_b32 v{vH0}, 4, v{vH0}\nv_lshl_or_b32 v{vH0}, v{vT0}, 8, v{vH0}\nv_xor_b32 v{vH1}, 128, v{vH0}")
    e(f"v_lshlrev_b32 v{vT2}, 2, v{vT0}\nv_xor_b32 v{vWo}, v{vT2}, v{vT1}\nv_lshlrev_b32 v{vWo}, 4, v{vWo}\nv_lshl_or_b32 v{vWo}, v{vT0}, 8, v{vWo}")
    e("s_waitcnt lgkmcnt(0)")
    srd(e, rDST, P_DST, E * 4); srd(e, rSRC, P_SRC, E * 4); srd(e, rEA, P_EA, E * 8)
    e("s_mov_b32 exec_hi, 0x1ffff")
    e(f"buffer_load_dwordx4 {v(vD,4)}, v{vO16}, {s(rDST,4)}, 0 offen")
    e(f"buffer_load_dwordx4 {v(vS,4)}, v{vO16}, {s(rSRC,4)}, 0 offen")
    e(f"buffer_load_dwordx4 {v(vEA,4)}, v{vO32}, {s(rEA,4)}, 0 offen")
    e(f"buffer_load_dwordx4 {v(vEA+4,4)}, v{vO32}, {s(rEA,4)}, 0 offen offset:16")
    e(f"s_mov_b32 s{sC}, {E//4}\nv_cmp_gt_u32 {s(sVal,2)}, s{sC}, v{vU}")
    e("s_mov_b32 exec_hi, -1")
    srd(e, rH, P_H, f"s{sNV}", off=f"s{sA}")
    e(f"s_add_u32 s{sA}, s{sA}, {WS_B}")
    srd(e, rB, sWS, f"s{sNV}", off=f"s{sA}")
    e(f"s_lshl_b32 s{sK}, s{sW}, 10")
    for i in range(4):
        e(f"s_add_u32 s{sA}, s{sK}, {i*8192}\ns_add_u32 m0, s{sA}, {L_H}\ns_nop 0")
        e(f"buffer_load_dwordx4 v{vH1 if i&1 else vH0}, {s(rH,4)}, s{sA} offen lds")
    srd(e, rDST, P_WE, 32768, off=128*256)
    for i in range(4):
        e(f"s_add_u32 s{sA}, s{sK}, {i*8192}\ns_add_u32 m0, s{sA}, {L_W}\ns_nop 0")
        e(f"buffer_load_dwordx4 v{vWo}, {s(rDST,4)}, s{sA} offen lds")
    e(f"s_lshl_b32 s{sA}, s2, 5\nv_and_b32 v{vT0}, 31, v{vL}\nv_add_u32 v{vWbA}, s{sA}, v{vT0}")
    e(f"v_bfe_u32 v{vT0}, v{vWbA}, 8, 3\nv_lshlrev_b32 v{vT0}, 4, v{vT0}")
    e(f"v_bfe_u32 v{vT1}, v{vWbA}, 0, 1\nv_lshl_add_u32 v{vT0}, v{vT1}, 1, v{vT0}")
    e(f"v_bfe_u32 v{vT1}, v{vWbA}, 1, 1\nv_lshl_add_u32 v{vT0}, v{vT1}, 3, v{vT0}")
    e(f"v_bfe_u32 v{vT1}, v{vWbA}, 7, 1\nv_lshl_add_u32 v{vT0}, v{vT1}, 2, v{vT0}")
    e(f"v_lshlrev_b32 v{vT0}, 8, v{vT0}")
    e(f"v_bfe_u32 v{vT1}, v{vWbA}, 2, 5\nv_lshl_add_u32 v{vT0}, v{vT1}, 2, v{vT0}")
    e(f"v_bfe_u32 v{vT1}, v{vWbA}, 11, 1\nv_lshl_add_u32 v{vT0}, v{vT1}, 1, v{vT0}")
    e(f"v_bfe_u32 v{vT1}, v{vWbA}, 12, 1\nv_lshl_add_u32 v{vT0}, v{vT1}, 7, v{vT0}")
    e(f"v_add_u32 v{vT0}, {128*256}, v{vT0}")
    e(f"global_load_ushort v{vWb}, v{vT0}, {s(P_WH,2)}\nglobal_load_ushort v{vWb+1}, v{vT0}, {s(P_WH,2)} offset:256")
    e(f"s_mul_i32 s{sA}, s2, {CH*12}\ns_add_u32 s{sA}, s{sA}, {WS_REC}")
    srd(e, rREC, sWS, CH * 12, off=f"s{sA}")
    e(f"s_lshl_b32 s{sA}, s2, 10\ns_add_u32 s{sA}, s{sA}, {WS_OFF}\ns_add_u32 s{sOffp}, s{sWS}, s{sA}\ns_addc_u32 s{sOffp+1}, s{sWS+1}, 0")
    e("s_waitcnt lgkmcnt(0)\ns_barrier")
    e(f"s_mov_b32 s{sC}, 42800\ns_mov_b32 s{sA}, {L_HIST}")
    e("s_waitcnt vmcnt(13)")
    for i in range(4):
        e(f"v_mul_u32_u24 v{vQ+i}, s{sC}, v{vD+i}\nv_lshrrev_b32 v{vQ+i}, 22, v{vQ+i}")
        e(f"v_mul_u32_u24 v{vT0}, {NPW}, v{vQ+i}\nv_sub_u32 v{vD+i}, v{vD+i}, v{vT0}")
        e(f"v_lshl_add_u32 v{vQ+i}, v{vQ+i}, 2, s{sA}")
    e(f"s_mov_b64 exec, {s(sVal,2)}")
    for i in range(4):
        e(f"ds_add_rtn_u32 v{vR+i}, v{vQ+i}, v{vOne}")
    e("s_mov_b64 exec, -1")
    e("s_waitcnt vmcnt(12)")
    for i in range(4):
        e(f"v_lshl_or_b32 v{vS+i}, v{vD+i}, 16, v{vS+i}")
    e(f"v_lshlrev_b32 v{vT3}, 4, v{vL}\nv_add_u32 v{vT2}, s{sA}, v{vT3}")
    e("s_waitcnt lgkmcnt(0)\ns_barrier")
    e(f"ds_read_b128 {v(vC,4)}, v{vT2}\ns_waitcnt lgkmcnt(0)")
    e(f"v_add_u32 v{vT0}, v{vC}, v{vC+1}\nv_add3_u32 v{vT0}, v{vT0}, v{vC+2}, v{vC+3}\nv_mov_b32 v{vT1}, v{vT0}")
    scan_dpp(e, "v_add_u32", vT1, None)
    e(f"v_sub_u32 v{vP}, v{vT1}, v{vT0}")
    for i in range(3):
        e(f"v_add_u32 v{vP+i+1}, v{vP+i}, v{vC+i}")
    e(f"ds_write_b128 v{vT2}, {v(vP,4)} offset:{L_BASE-L_HIST}")
    for i in range(4):
        e(f"ds_read_b32 v{vD+i}, v{vQ+i} offset:{L_BASE-L_HIST}")
    for i in range(4):
        e(f"v_lshl_or_b32 v{vC+i}, v{vC+i}, 16, v{vP+i}")
    e(f"s_cmp_lg_u32 s{sW}, 0\ns_cbranch_scc1 K1_NOOFF")
    e(f"global_store_dwordx4 v{vT3}, {v(vC,4)}, {s(sOffp,2)}")
    e("K1_NOOFF:")
    e(f"s_mov_b32 s{sA}, {L_STAGE}")
    e("s_waitcnt vmcnt(10) lgkmcnt(0)")
    for i in range(4):
        e(f"v_add_u32 v{vR+i}, v{vR+i}, v{vD+i}\nv_mad_u32_u24 v{vR+i}, v{vR+i}, 12, s{sA}")
    e(f"s_mov_b64 exec, {s(sVal,2)}")
    for i in range(4):
        e(f"ds_write2_b32 v{vR+i}, v{vEA+2*i}, v{vEA+2*i+1} offset0:0 offset1:1")
        e(f"ds_write_b32 v{vR+i}, v{vS+i} offset:8")
    e("s_mov_b64 exec, -1")
    e(f"v_and_b32 v{vT0}, 31, v{vL}\nv_lshrrev_b32 v{vT1}, 5, v{vL}")
    e(f"v_and_b32 v{vT2}, 15, v{vL}\nv_xor_b32 v{vT2}, v{vT2}, v{vT1}\nv_lshlrev_b32 v{vT2}, 4, v{vT2}")
    e(f"s_lshl_b32 s{sA}, s{sT}, 8\nv_lshl_add_u32 v{vAH}, v{vT0}, 10, v{vT2}\nv_add_u32 v{vAH}, s{sA}, v{vAH}")
    e(f"s_lshl_b32 s{sB_}, s{sHF}, 7\ns_add_u32 s{sA}, s{sA}, s{sB_}")
    e(f"v_lshlrev_b32 v{vSt}, 2, v{vT0}\nv_lshl_add_u32 v{vSt}, v{vT1}, 12, v{vSt}\nv_add_u32 v{vSt}, s{sA}, v{vSt}")
    tr_addr(e, vAW, vL, sHF, L_W, vT0, vT1, vT2, sA)
    e(f"v_lshlrev_b32 v{vT0}, 4, v0\nv_add_u32 v{vT1}, {L_STAGE}, v{vT0}")
    e("s_waitcnt vmcnt(0) lgkmcnt(0)\ns_barrier")
    for i in range(3):
        e(f"ds_read_b128 {v(vEA+4*i if i < 2 else vD,4)}, v{vT1} offset:{i*8192}")
    e(f"s_mov_b32 s{sO1}, 8192\ns_mov_b32 s{sO2}, 16384\ns_mov_b32 s{sO3}, 24576")
    for i in range(3):
        e(f"s_waitcnt lgkmcnt({2-i})")
        e(f"buffer_store_dwordx4 {v(vEA+4*i if i < 2 else vD,4)}, v{vT0}, {s(rREC,4)}, {['0', f's{sO1}', f's{sO2}'][i]} offen")
    e(f"s_cmp_lg_u32 s{sW}, 7\ns_cbranch_scc1 K1_NOWB")
    e(f"v_lshl_or_b32 v{vWb}, v{vWb+1}, 16, v{vWb}\nv_lshlrev_b32 v{vWbA}, 2, v{vWbA}\nv_add_u32 v{vWbA}, {WS_WB}, v{vWbA}")
    e(f"global_store_dword v{vWbA}, v{vWb}, {s(sWS,2)}")
    e(f"v_mov_b32 v{vWb+1}, 0\nv_lshlrev_b32 v{vWbA}, 2, v{vL}")
    e("s_cmp_lg_u32 s2, 0\ns_cbranch_scc1 K1_NOWB")
    e(f"global_store_dword v{vWbA}, v{vWb+1}, {s(sWS,2)}")
    e("K1_NOWB:")
    gemm(e, vAcc, vAH, vAW, vHA, vWf, vT2)
    e(f"s_mov_b32 s{sA}, {hex(LOG2E)}\ns_mov_b32 s{sC}, 0x7fff0000\ns_nop 7\ns_nop 3")
    for r in range(13):
        lo, hi = vAcc + r, vAcc + 16 + r
        e(f"v_mul_f32 v{lo}, s{sA}, v{lo}\nv_mul_f32 v{hi}, s{sA}, v{hi}")
        e(f"v_cvt_pk_bf16_f32 v{lo}, v{lo}, v{hi}")
        e(f"v_and_b32 v{hi}, 0x7fffffff, v{hi}\nv_add_u32 v{hi}, 0x8000, v{hi}")
        e(f"v_sub_u32_sdwa v{hi}, v{hi}, v{lo} clamp dst_sel:DWORD dst_unused:UNUSED_PAD src0_sel:DWORD src1_sel:WORD_0")
        e(f"v_bfi_b32 v{lo}, s{sC}, v{hi}, v{lo}")
        e(f"buffer_store_dword v{lo}, v{vSt}, {s(rB,4)}, {['0', f's{sO1}', f's{sO2}', f's{sO3}'][r>>2]} offen offset:{(r&3)*1024}")
    e("K1_END:\ns_endpgm")
    return V.hi, S.hi, lds

def tr_addr(e, vAW, vL, sHF, base, t0, t1, t2, sA):
    e(f"v_bfe_u32 v{t0}, v{vL}, 2, 2")
    e(f"s_lshl_b32 s{sA}, s{sHF}, 1\nv_xor_b32 v{t1}, s{sA}, v{t0}\nv_lshlrev_b32 v{t1}, 6, v{t1}")
    e(f"v_lshl_add_u32 v{t1}, v{t0}, 8, v{t1}")
    e(f"v_lshrrev_b32 v{t0}, 5, v{vL}\nv_lshl_add_u32 v{t1}, v{t0}, 11, v{t1}")
    e(f"v_bfe_u32 v{t0}, v{vL}, 4, 1\nv_lshl_add_u32 v{t1}, v{t0}, 5, v{t1}")
    e(f"v_and_b32 v{t0}, 3, v{vL}\nv_lshl_add_u32 v{t1}, v{t0}, 3, v{t1}")
    e(f"v_xor_b32 v{t2}, 64, v{t1}")
    e(f"v_add_u32 v{vAW}, {base}, v{t1}\nv_add_u32 v{vAW+1}, {base}, v{t2}")

def gemm(e, acc, vAH, vAW, vHA, vWf, t):
    def loads(st):
        p = st & 1
        e(f"v_xor_b32 v{t}, {st<<5}, v{vAH}\nds_read_b128 {v(vHA+4*p,4)}, v{t}")
        for bl in range(2):
            for u in range(2):
                e(f"ds_read_b64_tr_b16 {v(vWf+8*p+4*bl+2*u,2)}, v{vAW+bl} offset:{st*4096+u*1024}")
    loads(0)
    for st in range(8):
        p = st & 1
        if st < 7:
            loads(st + 1)
            e("s_waitcnt lgkmcnt(5)")
        else:
            e("s_waitcnt lgkmcnt(0)")
        for bl in range(2):
            c = "0" if st == 0 else v(acc + 16 * bl, 16)
            e(f"{MFMA} {v(acc+16*bl,16)}, {v(vHA+4*p,4)}, {v(vWf+8*p+4*bl,4)}, {c}")

from gen1_k2 import k2

def main():
    e = Asm()
    e(".amdgcn_target \"amdgcn-amd-amdhsa--gfx950\"\n.text")
    e(".globl k1_kernel\n.p2align 8\n.type k1_kernel,@function")
    nv1, ns1, lds1 = k1(e)
    e(".globl k2_kernel\n.p2align 8\n.type k2_kernel,@function")
    nv2, ns2, lds2 = k2(e, sys.modules[__name__])
    body = e.text()
    for h in check(body): print(h)
    tail = ".section .rodata,\"a\"\n.p2align 6\n" + kd("k1_kernel", nv1, ns1) + "\n.p2align 6\n" + kd("k2_kernel", nv2, ns2) + "\n"
    head = HDR + f"; @launch kernel=k1_kernel grid=(256,1,1) block=(512,1,1) lds={lds1}\n; @launch kernel=k2_kernel grid=(256,1,1) block=(512,1,1) lds={lds2}\n"
    out = sys.argv[1] if len(sys.argv) > 1 else "standalone__cheap_equivariant_egnn__graph.s"
    open(out, "w").write(head + body + tail)
    print("k1 v%d s%d lds%d | k2 v%d s%d lds%d" % (nv1, ns1, lds1, nv2, ns2, lds2))

if __name__ == "__main__":
    main()
```

```python
import sys, re
def mk(src, dst, i, j, mode):
    s = open(src).read()
    red = {"max": "v_max_u32", "min": "v_min_u32", "avg": "v_add_u32"}[mode]
    code = f""".globl p_kernel
.p2align 8
.type p_kernel,@function
p_kernel:
    s_cmp_ge_u32 s2, 1
    s_cbranch_scc1 P_END
    s_load_dwordx2 s[4:5], s[0:1], 80
    v_lshlrev_b32 v1, 6, v0
    v_add_u32 v1, 0x4000000, v1
    v_mov_b32 v6, 0x4000000
    s_waitcnt lgkmcnt(0)
    global_load_dword v6, v6, s[4:5] offset:{4*i}
    v_mov_b32 v2, -1
    v_mov_b32 v3, {-1 if mode == 'min' else 0}
    s_mov_b32 s6, 0
    s_waitcnt vmcnt(0)
    v_subrev_u32 v6, 10000, v6
P_LOOP:
    global_load_dword v4, v1, s[4:5] offset:{4*i}
    global_load_dword v5, v1, s[4:5] offset:{4*j}
    v_add_u32 v1, 4096, v1
    s_waitcnt vmcnt(0)
    v_sub_u32 v4, v4, v6
    v_sub_u32 v5, v5, v6
    v_min_u32 v2, v2, v4
    {red} v3, v3, v5
    s_add_u32 s6, s6, 1
    s_cmp_lt_u32 s6, 32
    s_cbranch_scc1 P_LOOP
    s_mov_b32 s6, 0
    s_mov_b32 s7, -1
    s_mov_b32 s8, {-1 if mode == 'min' else 0}
P_RED:
    v_readlane_b32 s9, v2, s6
    v_readlane_b32 s10, v3, s6
    s_nop 3
    s_min_u32 s7, s7, s9
    {red.replace('v_', 's_')} s8, s8, s10
    s_add_u32 s6, s6, 1
    s_cmp_lt_u32 s6, 64
    s_cbranch_scc1 P_RED
    s_lshr_b32 s8, s8, {11 if mode == 'avg' else 0}
    s_sub_u32 s8, s8, s7
    s_min_u32 s8, s8, 10000
    s_lshl_b32 s8, s8, 2
    s_memrealtime s[10:11]
    s_waitcnt lgkmcnt(0)
P_SPIN:
    s_memrealtime s[12:13]
    s_waitcnt lgkmcnt(0)
    s_sub_u32 s12, s12, s10
    s_cmp_lt_u32 s12, s8
    s_cbranch_scc1 P_SPIN
P_END:
    s_endpgm
"""
    kd = """.p2align 6
.amdhsa_kernel p_kernel
.amdhsa_next_free_vgpr 8
.amdhsa_next_free_sgpr 16
.amdhsa_accum_offset 8
.amdhsa_group_segment_fixed_size 0
.amdhsa_kernarg_size 88
.amdhsa_user_sgpr_count 2
.amdhsa_user_sgpr_kernarg_segment_ptr 1
.amdhsa_system_sgpr_workgroup_id_x 1
.end_amdhsa_kernel
"""
    s = s.replace('.amdgcn_target', '; @launch kernel=p_kernel grid=(1,1,1) block=(64,1,1) lds=0\n.amdgcn_target', 1)
    s = s.replace('.section .rodata', code + '.section .rodata') + kd
    open(dst, "w").write(s)
if __name__ == "__main__":
    src = sys.argv[1]
    for k, spec in enumerate(sys.argv[2:]):
        i, j, mode = spec.split(",")
        mk(src, f"p{k}.s", int(i), int(j), mode)
```

```python
import re

class Asm:
    def __init__(self):
        self.lines = []
    def __call__(self, s=""):
        for l in s.split("\n"):
            l = l.strip()
            if not l:
                continue
            if l.endswith(":") or l.startswith(".") or l.startswith(";"):
                self.lines.append(l)
            else:
                self.lines.append("    " + l)
    def text(self):
        return "\n".join(self.lines) + "\n"

class Regs:
    def __init__(self, prefix, start, limit):
        self.p, self.n, self.limit, self.names = prefix, start, limit, {}
        self.hi = start
    def alloc(self, name, cnt=1, align=None):
        if align is None:
            align = 1 if cnt == 1 else (2 if self.p == "v" else min(cnt, 4))
        self.n = (self.n + align - 1) // align * align
        r = self.n
        self.n += cnt
        assert self.n <= self.limit, (name, self.n)
        self.hi = max(self.hi, self.n)
        self.names[name] = (r, cnt)
        return r

def v(r, n=1):
    return f"v{r}" if n == 1 else f"v[{r}:{r+n-1}]"
def s(r, n=1):
    return f"s{r}" if n == 1 else f"s[{r}:{r+n-1}]"

TRANS = ("v_exp_f32", "v_log_f32", "v_rcp_f32", "v_rsq_f32", "v_sqrt_f32", "v_sin_f32", "v_cos_f32", "v_rcp_iflag_f32")
REG_RE = re.compile(r"^(-|\|)?(abs\()?([vsa])(?:(\d+)|\[(\d+):(\d+)\])\)?\|?$")

def regs_of(tok):
    tok = tok.strip()
    if tok == "vcc": return {("s", "vcc")}
    if tok in ("vcc_lo", "vcc_hi"): return {("s", "vcc")}
    if tok in ("exec", "exec_lo", "exec_hi"): return {("s", "exec")}
    if tok == "m0": return {("s", "m0")}
    m = REG_RE.match(tok)
    if not m: return set()
    k = m.group(3)
    if m.group(4) is not None: lo = hi = int(m.group(4))
    else: lo, hi = int(m.group(5)), int(m.group(6))
    return {(k, i) for i in range(lo, hi + 1)}

class Ins:
    def __init__(self, text, idx):
        self.text, self.idx = text, idx
        t = text.split(";")[0].strip()
        parts = t.split(None, 1)
        self.op = parts[0]
        rest = parts[1] if len(parts) > 1 else ""
        toks = [x.strip() for x in rest.split(",")] if rest else []
        self.mods = ""
        if toks:
            last = toks[-1].split(None, 1)
            mod_at = None
            out = []
            for i, x in enumerate(toks):
                sp = x.split(None, 1)
                out.append(sp[0])
                if len(sp) > 1:
                    self.mods = sp[1] + " " + ",".join(toks[i+1:])
                    break
            toks = out
        self.toks = toks
        op = self.op
        self.mfma = op.startswith("v_mfma")
        self.valu = op.startswith("v_") and not self.mfma
        self.trans = op.replace("_e32", "").replace("_e64", "") in TRANS
        self.ds = op.startswith("ds_")
        self.vmem = op.startswith(("buffer_", "global_", "flat_"))
        self.salu = op.startswith("s_")
        self.dpp = "row_" in self.mods or "quad_perm" in self.mods or "wave_" in self.mods or op.endswith("_dpp")
        self.sdwa_dst = "dst_sel:" in self.mods and "dst_sel:DWORD" not in self.mods
        R = [regs_of(x) for x in toks]
        self.w, self.r = set(), set()
        self.srcc = set(); self.srcab = set(); self.wide_data = set()
        if self.mfma:
            self.w = R[0]; self.srcab = R[1] | R[2]; self.srcc = R[3]; self.r = self.srcab | self.srcc
            self.passes = 8 if "32x32x16" in op else (2 if "4x4x4" in op else 4)
        elif self.valu:
            nd = 1
            if re.match(r"v_(add|sub|subrev|addc|subb)_co_", op) or op.startswith("v_mad_u64"): nd = 2
            for x in R[:nd]: self.w |= x
            for x in R[nd:]: self.r |= x
            if op.startswith("v_cmpx"): self.w |= {("s", "exec")}
            if op.startswith(("v_fmac", "v_pk_fmac", "v_dot2c", "v_writelane")) or "UNUSED_PRESERVE" in self.mods or self.dpp: self.r |= R[0]
            if op.startswith("v_permlane") or op.startswith("v_swap"):
                self.w |= R[1]; self.r |= R[0]
            if op.startswith("v_cndmask") and len(toks) == 3: self.r |= {("s", "vcc")}
        elif self.ds:
            if "read" in op or "rtn" in op or "permute" in op or "swizzle" in op:
                self.w = R[0]
                for x in R[1:]: self.r |= x
            else:
                for x in R: self.r |= x
        elif self.vmem:
            is_lds = " lds" in (" " + self.mods) or "_lds_" in op
            if "load" in op and not is_lds:
                self.w = R[0]
                for x in R[1:]: self.r |= x
            else:
                for x in R: self.r |= x
                if "store" in op and ("x3" in op or "x4" in op):
                    self.wide_data = R[0] if op.startswith("buffer") else R[1]
            self.is_lds = is_lds
        elif self.salu:
            if op.startswith(("s_cmp", "s_cbranch", "s_branch", "s_waitcnt", "s_barrier", "s_nop", "s_endpgm", "s_setprio", "s_sleep", "s_bitcmp")):
                for x in R: self.r |= x
            else:
                if R: self.w = R[0]
                for x in R[1:]: self.r |= x
                if "saveexec" in op: self.w |= {("s", "exec")}
        self.states = 1
        if op == "s_nop": self.states = int(toks[0], 0) + 1

def need(p, c):
    n = 0
    vw = {x for x in p.w if x[0] in "va"}
    sw = {x for x in p.w if x[0] == "s"}
    if p.valu:
        if c.mfma and vw & c.r: n = max(n, 2)
        if c.valu and c.dpp and vw & c.r: n = max(n, 2)
        if c.op.startswith("v_permlane") and vw & (c.r | c.w): n = max(n, 2)
        if c.op.startswith(("v_readlane", "v_readfirstlane")) and vw & c.r: n = max(n, 1)
        if p.trans and (c.valu and not c.trans) and vw & c.r: n = max(n, 1)
        if p.sdwa_dst and c.valu and vw & (c.r | c.w): n = max(n, 1)
        if sw & c.r:
            if c.vmem: n = max(n, 5)
            if c.valu or c.mfma:
                n = max(n, 4 if c.op.startswith(("v_readlane", "v_writelane")) else 2)
        if ("s", "exec") in sw:
            if c.dpp: n = max(n, 5)
            if c.mfma or c.op.startswith(("v_readlane", "v_readfirstlane", "v_writelane", "v_permlane")): n = max(n, 4)
    if p.op.startswith("v_dot") and vw & (c.r | c.w):
        if not (c.op == p.op and not vw & (regs_of(c.toks[1]) | regs_of(c.toks[2]))): n = max(n, 3)
    if p.mfma:
        big = {8: 12, 4: 8, 2: 5}[p.passes]; part = {8: 10, 4: 6, 2: 4}[p.passes]
        if c.mfma:
            if p.w & c.srcab: n = max(n, big)
            if p.w & c.srcc and (p.w != c.srcc or p.passes != c.passes): n = max(n, part)
            if p.w & c.srcc and p.passes == 2: n = max(n, 2)
            if p.w & c.w and p.w != c.srcc and not (p.w == c.w): n = max(n, part)
        elif (c.valu or c.ds or c.vmem) and p.w & (c.r | c.w): n = max(n, big)
        if (c.valu or c.ds or c.vmem) and p.srcc & c.w and not p.w & c.w: n = max(n, {8: 7, 4: 3, 2: 1}[p.passes])
    if p.wide_data and p.wide_data & c.w: n = max(n, 2)
    if p.salu and ("s", "m0") in p.w and c.vmem and getattr(c, "is_lds", False): n = max(n, 1)
    return n

def check(text):
    ins, labels = [], {}
    for l in text.split("\n"):
        t = l.split(";")[0].strip()
        if not t: continue
        if t.endswith(":"):
            labels[t[:-1]] = len(ins); continue
        if t.startswith("."): continue
        ins.append(Ins(t, len(ins)))
    def succ(i):
        x = ins[i]
        if x.op == "s_endpgm": return []
        if x.op == "s_branch": return [labels[x.toks[0]]]
        if x.op.startswith("s_cbranch"): return [labels[x.toks[0]], i + 1]
        return [i + 1] if i + 1 < len(ins) else []
    bad = set()
    for p in ins:
        if not (p.valu or p.mfma or p.wide_data or (p.salu and ("s", "m0") in p.w)): continue
        stack = [(j, 0) for j in succ(p.idx)]
        best = {}
        while stack:
            j, d = stack.pop()
            if j >= len(ins) or d >= 12 or best.get(j, 99) <= d: continue
            best[j] = d
            c = ins[j]
            n = need(p, c)
            if n > d: bad.add((p.idx, j, n, d))
            for k in succ(j): stack.append((k, d + c.states))
    out = []
    for a, b, n, d in sorted(bad):
        out.append(f"HAZARD need {n} have {d}: [{a}] {ins[a].text}  ->  [{b}] {ins[b].text}")
    return out
```

```python
from asmlib import *
import types, mainloop

def k2(e, G):
    N, E, NPW, CH = G.N, G.E, G.NPW, G.CH
    MFMA, srd, scan_dpp, tr_addr, gemm = G.MFMA, G.srd, G.scan_dpp, G.tr_addr, G.gemm
    P_H, P_POS, P_WE, P_WX, P_WH = G.P_H, G.P_POS, G.P_WE, G.P_WX, G.P_WH
    L_OH, L_CNT, L_FLAG, L_WX, L_PACC, L_POSL, L_TILES = 0, 128, 192, 256, 768, 1944, 2560
    TB, CAP = 768, 160
    L_H, L_WD, L_WT, L_SCR = 64000, 89600, 122368, 155136
    lds = 163840
    S = Regs("s", 20, 102); V = Regs("v", 1, 256)
    sOUT = S.alloc("out", 4); sWS = S.alloc("ws", 2)
    rH, rO, rB, rREC, rPOS, rX = (S.alloc(n, 4) for n in ("h", "o", "b", "rec", "pos", "x"))
    sW, sT, sHF, sA, sB_, sC, sNV, sK, sBeta, sTot, sRound, sNT, sI, sGQ, sNQ = (S.alloc(n) for n in "w t hf a b c nv k beta tot round nt i gq nq".split())
    sD, sB0, sB1, sB2, sO1, sO2, sO3, sPend, sMore, sHiM, sScr = (S.alloc(n) for n in "d b0 b1 b2 o1 o2 o3 pend more him scr".split())
    sM = S.alloc("m", 8, 2); sGM = S.alloc("gm", 2); sT2 = S.alloc("t2", 2); sPM = S.alloc("pm", 2); sCn = S.alloc("cn", 4); sCu = S.alloc("cu", 4)
    vL, vWt, aX, aE, aI, cX, cE, cI, cN, cM, vDesc, vOFF, vDone, vSt, vOne = (V.alloc(n) for n in "l wt ax ae ai cx ce ci cn cm desc off done st one".split())
    T = V.alloc("T", 32); Z = V.alloc("Z", 32); Q = V.alloc("Q", 8); R = V.alloc("R", 8); P = V.alloc("P", 8)
    SEL = V.alloc("SEL", 16); MC = V.alloc("MC", 16); RAW = V.alloc("RAW", 32); DL = V.alloc("DL", 16); DH = V.alloc("DH", 16)
    M = V.alloc("M", 8); F = V.alloc("F", 4); X = V.alloc("X", 8); NID = V.alloc("NID", 4); t = V.alloc("t", 8); u = V.alloc("u", 8)
    cW, cC, cP = (V.alloc(n) for n in "cw cc cp".split()); ZR = V.alloc("zr", 4)
    L_LUT = 64000; PRIO = G.PRIO
    vStamp = V.alloc("stamp"); sSt = S.alloc("stt", 2)
    st = lambda i: G.stamp(e, i, vStamp, sSt)

    e("k2_kernel:")
    e("s_cmp_ge_u32 s2, 256\ns_cbranch_scc1 K2_END")
    st(5)
    e(f"s_load_dwordx16 s[4:19], s[0:1], 0\ns_load_dwordx4 {s(sOUT,4)}, s[0:1], 64\ns_load_dwordx2 {s(sWS,2)}, s[0:1], 80")
    e(f"v_and_b32 v{vL}, 63, v0\nv_lshrrev_b32 v{t}, 6, v0\nv_mov_b32 v{vOne}, 1")
    e(f"v_readfirstlane_b32 s{sW}, v{t}")
    e(f"v_mov_b32 v{vOFF}, 0\nv_mov_b32 v{vDone}, 0")
    e(f"s_lshr_b32 s{sT}, s{sW}, 1\ns_and_b32 s{sHF}, s{sW}, 1")
    e(f"s_mul_i32 s{sK}, s2, {NPW}\ns_sub_u32 s{sNV}, {N}, s{sK}\ns_min_u32 s{sNV}, s{sNV}, {NPW}\ns_lshl_b32 s{sNV}, s{sNV}, 8")
    e(f"s_lshl_b32 s{sA}, s{sW}, 15\ns_lshl_b32 s{sB_}, s2, 2\ns_add_u32 s{sA}, s{sA}, s{sB_}\ns_add_u32 s{sA}, s{sA}, {G.WS_OFF}")
    e(f"v_lshl_add_u32 v{t}, v{vL}, 10, s{sA}")
    e(f"s_mul_i32 s{sA}, s2, 588\nv_lshl_add_u32 v{t+1}, v0, 2, s{sA}")
    e(f"v_and_b32 v{t+2}, 127, v0\nv_lshlrev_b32 v{t+2}, 1, v{t+2}")
    e(f"s_lshl_b32 s{sA}, s{sHF}, 7\ns_add_u32 s{sA}, s{sA}, {256*256}\nv_and_b32 v{t+3}, 31, v{vL}\nv_lshl_add_u32 v{t+3}, v{t+3}, 1, s{sA}")
    e(f"v_lshlrev_b32 v{t+4}, 4, v0")
    e(f"v_lshrrev_b32 v{u}, 4, v{vL}\nv_and_b32 v{u+1}, 15, v{vL}")
    e(f"v_xor_b32 v{u+2}, s{sW}, v{u+1}\nv_lshlrev_b32 v{u+2}, 4, v{u+2}\nv_lshl_or_b32 v{u+2}, v{u}, 8, v{u+2}\nv_xor_b32 v{u+3}, 128, v{u+2}")
    e(f"v_lshlrev_b32 v{u+4}, 2, v{u}\nv_xor_b32 v{u+4}, v{u+4}, v{u+1}\nv_lshlrev_b32 v{u+4}, 4, v{u+4}\nv_lshl_or_b32 v{u+4}, v{u}, 8, v{u+4}")
    e(f"s_mov_b32 s{sO1}, 8192\ns_mov_b32 s{sO2}, 16384\ns_mov_b32 s{sO3}, 24576\ns_mov_b32 s{sHiM}, 0xffff0000")
    e(f"s_mov_b32 s{sBeta}, 0\ns_mov_b32 s{sRound}, 0")
    e(f"s_lshl_b32 s{sScr}, s{sW}, 10\ns_add_u32 s{sScr}, s{sScr}, {L_SCR}")
    e("s_waitcnt lgkmcnt(0)")
    if G.WSOFF: e(f"s_add_u32 s{sWS}, s{sWS}, {G.WSOFF}\ns_addc_u32 s{sWS+1}, s{sWS+1}, 0")
    e("s_mov_b32 exec_hi, 0")
    e(f"global_load_dword v{vOFF}, v{t}, {s(sWS,2)}")
    e("s_mov_b32 exec_hi, -1")
    srd(e, rPOS, P_POS, N * 6)
    e(f"buffer_load_dword v{T+26}, v{t+1}, {s(rPOS,4)}, 0 offen")
    e(f"global_load_ushort v{T+27}, v{t+2}, {s(P_WX,2)}")
    for bl in range(2):
        for k in range(5):
            e(f"global_load_ushort v{T+16+5*bl+k}, v{t+3}, {s(P_WE,2)} offset:{k*256+bl*64}")
    srd(e, rX, P_WH, 32768)
    for i in range(4):
        e(f"buffer_load_dwordx4 {v(T+4*i,4)}, v{t+4}, {s(rX,4)}, {['0', f's{sO1}', f's{sO2}', f's{sO3}'][i]} offen")
    e(f"s_lshl_b32 s{sK}, s{sK}, 8")
    srd(e, rH, P_H, f"s{sNV}", off=f"s{sK}")
    srd(e, rO, sOUT, f"s{sNV}", off=f"s{sK}")
    e(f"s_lshl_b32 s{sK}, s{sW}, 10")
    for i in range(4):
        if i == 3:
            e(f"s_cmp_lg_u32 s{sW}, 0\ns_cbranch_scc1 K2_NOH3")
        e(f"s_add_u32 s{sA}, s{sK}, {i*8192}\ns_add_u32 m0, s{sA}, {L_H}\ns_nop 0")
        e(f"buffer_load_dwordx4 v{u+3 if i&1 else u+2}, {s(rH,4)}, s{sA} offen lds")
    e("K2_NOH3:")
    srd(e, rX, P_WE, 32768)
    for i in range(4):
        e(f"s_add_u32 s{sA}, s{sK}, {i*8192}\ns_add_u32 m0, s{sA}, {L_WD}\ns_nop 0")
        e(f"buffer_load_dwordx4 v{u+4}, {s(rX,4)}, s{sA} offen lds")
    srd(e, rREC, sWS, 256 * CH * 12, off=G.WS_REC)
    e(f"s_lshl_b32 s{sA}, s{sHF}, 7\ns_add_u32 s{sA}, s{sA}, {G.WS_B-128}")
    if G.EXP == 2: srd(e, rB, sWS, 0x800000, off=f"s{sA}")
    else: srd(e, rB, sWS, "-1", off=f"s{sA}", w3="0x800000", stride=4)
    e(f"s_lshl_b32 s{sA}, s{sHF}, 14\ns_add_u32 s{sA}, s{sA}, {G.WS_WB}")
    srd(e, rX, sWS, 16384, off=f"s{sA}")
    e(f"v_lshrrev_b32 v{t}, 5, v{vL}\nv_and_b32 v{t+1}, 31, v{vL}")
    e(f"v_lshlrev_b32 v{cI}, 4, v{t}\nv_add_u32 v{cI}, {512+32}, v{cI}")
    e(f"v_bfe_u32 v{t+2}, v{vL}, 2, 1\nv_lshlrev_b32 v{cX}, 7, v{t+2}\nv_lshl_add_u32 v{cX}, v{t}, 6, v{cX}")
    e(f"v_bfe_u32 v{t+2}, v{vL}, 3, 1\nv_lshl_add_u32 v{cX}, v{t+2}, 4, v{cX}")
    e(f"v_bfe_u32 v{t+2}, v{vL}, 4, 1\nv_and_b32 v{t+3}, 3, v{vL}\nv_lshl_add_u32 v{t+2}, v{t+2}, 2, v{t+3}\nv_lshl_add_u32 v{cN}, v{t+2}, 4, 16")
    e(f"v_lshlrev_b32 v{cE}, 4, v{t+1}\nv_add_u32 v{cE}, 0x100000, v{cE}\nv_mov_b32 v{cM}, 0x0c0c0100")
    e(f"s_lshl_b32 s{sA}, s{sHF}, 8\nv_lshl_add_u32 v{cW}, v{t}, 4, s{sA}\nv_lshlrev_b32 v{cC}, 2, v{t+3}")
    e(f"s_mul_i32 s{sA}, s{sT}, 12\nv_bfe_u32 v{cP}, v{vL}, 2, 3\nv_mul_u32_u24 v{cP}, 192, v{cP}\nv_add_u32 v{cP}, s{sA}, v{cP}")
    for i in range(4): e(f"v_mov_b32 v{ZR+i}, 0")
    e("s_mov_b32 exec_hi, 0")
    e(f"v_mov_b32 v{cM}, 0x0c0c0504")
    e(f"v_and_b32 v{cE}, 13, v{t+1}\nv_lshlrev_b32 v{cE}, 4, v{cE}\nv_lshrrev_b32 v{t+2}, 4, v{t+1}\nv_lshl_add_u32 v{cE}, v{t+2}, 3, v{cE}")
    e(f"v_and_b32 v{t+2}, 2, v{t+1}\nv_lshl_add_u32 v{cE}, v{t+2}, 1, v{cE}\nv_add_u32 v{cE}, 512, v{cE}")
    e("s_mov_b32 exec_hi, -1")
    e(f"s_lshl_b32 s{sA}, s{sT}, 8\ns_lshl_b32 s{sB_}, s{sHF}, 7\ns_add_u32 s{sA}, s{sA}, s{sB_}")
    e(f"v_lshlrev_b32 v{vSt}, 2, v{t+1}\nv_lshl_add_u32 v{vSt}, v{t}, 12, v{vSt}\nv_add_u32 v{vSt}, s{sA}, v{vSt}")
    e(f"v_lshlrev_b32 v{t+2}, 2, v{t}\nv_sub_u32 v{t+2}, v{t+1}, v{t+2}\nv_mov_b32 v{t+3}, 0x3f80")
    for q in range(4):
        for m in range(4):
            e(f"v_cmp_eq_u32 vcc, {8*q+m}, v{t+2}\ns_nop 1\nv_cndmask_b32 v{SEL+4*q+m}, 0, v{t+3}, vcc")
    e(f"v_lshrrev_b32 v{t}, 3, v{vL}\nv_and_b32 v{t+1}, 7, v{vL}\nv_add_u32 v{t+1}, 1, v{t+1}\nv_cmp_eq_u32 vcc, v{t}, v{t+1}")
    e(f"v_lshlrev_b32 v{t+2}, 1, v{vL}\ns_nop 0\nv_cndmask_b32 v{t}, 0, v{t+3}, vcc\nds_write_b16 v{t+2}, v{t}")
    e(f"v_mov_b32 v{t}, 0\nv_min_u32 v{t+1}, 293, v0\nv_lshlrev_b32 v{t+1}, 2, v{t+1}\nds_write_b32 v{t+1}, v{t} offset:{L_PACC}")

    e("K2_ROUND:")
    for i in range(4):
        e(f"v_mov_b32 v{u+i}, 0")
    e(f"v_lshlrev_b32 v{t}, 4, v0")
    for i in range(7):
        e(f"ds_write_b128 v{t}, {v(u,4)} offset:{L_TILES+i*8192}")
    e(f"v_and_b32 v{t}, 0xfff, v{t}\nds_write_b128 v{t}, {v(u,4)} offset:{L_TILES+7*8192}")
    e(f"v_and_b32 v{t}, 0x70, v{t}\nds_write_b128 v{t}, {v(u,4)} offset:{L_CNT}")
    e(f"v_lshl_add_u32 v{t+7}, v{vL}, 4, s{sScr}\nds_write_b128 v{t+7}, {v(u,4)}")
    e("s_waitcnt vmcnt(23)")
    st(6)
    e(f"v_lshrrev_b32 v{t}, 16, v{vOFF}\nv_mov_b32 v{t+1}, v{t}")
    scan_dpp(e, "v_add_u32", t + 1, None, full=False)
    e(f"s_lshl_b32 s{sA}, s{sW}, 5\nv_add_u32 v{t+2}, s{sA}, v{vL}\nv_readlane_b32 s{sTot}, v{t+1}, 31")
    e(f"v_sub_u32 v{t+1}, v{t+1}, v{t}\nv_and_b32 v{t+3}, 0xffff, v{vOFF}")
    e(f"v_mul_u32_u24 v{t+2}, {CH}, v{t+2}\nv_add_u32 v{t+2}, v{t+2}, v{t+3}\nv_sub_u32 v{t+2}, v{t+2}, v{t+1}")
    e(f"v_sub_u32 v{t+1}, v{t+1}, s{sBeta} clamp")
    e(f"v_cmp_ne_u32 vcc, 0, v{t}\ns_mov_b32 s{sA}, 256\nv_cmp_gt_u32 {s(sT2,2)}, s{sA}, v{t+1}")
    e(f"v_lshl_add_u32 v{t+1}, v{t+1}, 2, s{sScr}")
    e(f"s_and_b64 exec, vcc, {s(sT2,2)}\nds_max_u32 v{t+1}, v{t+2}\ns_mov_b64 exec, -1")
    e(f"ds_read_b128 {v(u,4)}, v{t+7}\ns_waitcnt lgkmcnt(0)")
    e(f"v_max3_u32 v{t}, v{u}, v{u+1}, v{u+2}\nv_max_u32 v{t}, v{t}, v{u+3}")
    scan_dpp(e, "v_max_u32", t, None)
    e(f"v_mov_b32 v{t+1}, 0\ns_nop 1\nv_mov_b32_dpp v{t+1}, v{t} wave_shr:1 row_mask:0xf bank_mask:0xf")
    e(f"v_max_u32 v{u}, v{u}, v{t+1}")
    for i in range(3):
        e(f"v_max_u32 v{u+i+1}, v{u+i+1}, v{u+i}")
    e(f"ds_write_b128 v{t+7}, {v(u,4)}\nv_lshl_add_u32 v{t+6}, v{vL}, 2, s{sScr}")
    for i in range(4):
        e(f"ds_read_b32 v{u+4+i}, v{t+6} offset:{256*i}")
    e(f"v_add_u32 v{t}, s{sBeta}, v{vL}\nv_mov_b32 v{t+5}, -16")
    for i in range(4):
        e(f"v_add_u32 v{t+1}, {64*i}, v{t}\nv_and_b32 v{t+2}, {1<<i}, v{vDone}")
        e(f"v_cmp_gt_u32 vcc, s{sTot}, v{t+1}\nv_cmp_eq_u32 {s(sT2,2)}, 0, v{t+2}")
        e(f"s_waitcnt lgkmcnt({3-i})")
        e(f"s_and_b64 {s(sM+2*i,2)}, vcc, {s(sT2,2)}")
        e(f"v_add_u32 v{t+1}, v{t+1}, v{u+4+i}\nv_mul_u32_u24 v{t+1}, 12, v{t+1}")
        e(f"v_cndmask_b32 v{t+1}, v{t+5}, v{t+1}, {s(sM+2*i,2)}")
        e(f"buffer_load_dwordx3 {v(DL+4*i,3)}, v{t+1}, {s(rREC,4)}, 0 offen")
    e(f"s_cmp_lg_u32 s{sRound}, 0\ns_cbranch_scc1 K2_NOSTAGE")
    e("s_waitcnt vmcnt(4)")
    e(f"v_min_u32 v{t}, 147, v0\nv_lshlrev_b32 v{t}, 2, v{t}\nds_write_b32 v{t}, v{T+26} offset:{L_POSL}")
    e(f"v_and_b32 v{t}, 127, v0\nv_lshlrev_b32 v{t}, 2, v{t}\nv_lshlrev_b32 v{T+27}, 16, v{T+27}\nv_mul_f32 v{T+27}, {hex(G.LN2)}, v{T+27}\nds_write_b32 v{t}, v{T+27} offset:{L_WX}")
    e(f"v_bfe_u32 v{t}, v0, 5, 1\ns_mov_b32 s{sA}, 0x02020202\nv_mul_lo_u32 v{t}, v{t}, s{sA}\nv_xor_b32 v{t}, 0x05040100, v{t}\nv_xor_b32 v{t+1}, s{sA}, v{t}")
    e(f"v_bfe_u32 v{t+2}, v0, 4, 1\nv_lshlrev_b32 v{t+2}, 3, v{t+2}\nv_xor_b32 v{t+2}, v{t+2}, v0\nv_lshlrev_b32 v{t+2}, 4, v{t+2}\nv_add_u32 v{t+2}, {L_WT}, v{t+2}")
    for i in range(4):
        d = T + 4 * i
        o = u + 4 * (i & 1)
        e(f"v_perm_b32 v{o}, v{d+1}, v{d}, v{t}\nv_perm_b32 v{o+1}, v{d+3}, v{d+2}, v{t}")
        e(f"v_perm_b32 v{o+2}, v{d+1}, v{d}, v{t+1}\nv_perm_b32 v{o+3}, v{d+3}, v{d+2}, v{t+1}")
        e(f"ds_write_b128 v{t+2}, {v(o,4)} offset:{8192*i}")
    e(f"s_mov_b32 s{sA}, {hex(G.LOG2E)}")
    for bl in range(2):
        w = T + 16 + 5 * bl
        for k in range(5):
            e(f"v_lshlrev_b32 v{w+k}, 16, v{w+k}")
            if bl: e(f"v_mul_f32 v{w+k}, s{sA}, v{w+k}")
        e(f"v_cvt_pk_bf16_f32 v{P+4*bl}, v{w+1}, v{w+2}\nv_cvt_pk_bf16_f32 v{P+4*bl+1}, v{w+3}, v{w+4}")
        e(f"v_mov_b32 v{P+4*bl+2}, 0\nv_mov_b32 v{P+4*bl+3}, 0\nv_mov_b32 v{Q+4*bl+3}, v{w}")
    e("K2_NOSTAGE:")
    e("s_waitcnt lgkmcnt(0)\ns_barrier")
    st(7)
    PS, PD, aR, aW4, RK, LL = MC, MC + 8, X, X + 4, NID, F
    for i in range(4):
        w = DL + 4 * i + 2
        e(f"s_waitcnt vmcnt(3)")
        e(f"v_and_b32 v{w+1}, 0xffff, v{w}\nv_lshrrev_b32 v{LL+i}, 16, v{w}")
        e(f"v_mul_u32_u24 v{t}, 6, v{w+1}\nv_and_b32 v{t}, -4, v{t}")
        e(f"buffer_load_dwordx2 {v(PS+2*i,2)}, v{t}, {s(rPOS,4)}, 0 offen")
        e(f"v_and_b32 v{aR+i}, 15, v{LL+i}\nv_lshlrev_b32 v{t+1}, 2, v{aR+i}")
        e(f"v_mul_u32_u24 v{t+2}, 6, v{LL+i}\nv_and_b32 v{t+2}, -4, v{t+2}\nv_add_u32 v{t+2}, {L_POSL}, v{t+2}")
        e(f"s_mov_b64 exec, {s(sM+2*i,2)}\nds_add_rtn_u32 v{RK+i}, v{t+1}, v{vOne} offset:{L_CNT}\ns_mov_b64 exec, -1")
        e(f"ds_read2_b32 {v(PD+2*i,2)}, v{t+2} offset0:0 offset1:1")
    e(f"s_mov_b32 s{sA}, {CAP}\ns_mov_b32 s{sB_}, {TB}\nv_mov_b32 v{t+7}, {L_TILES}\nv_mov_b32 v{t+6}, 0")
    for i in range(4):
        w = DL + 4 * i + 2
        if i == 0: e("s_waitcnt lgkmcnt(0)")
        e(f"v_cmp_gt_u32 vcc, s{sA}, v{RK+i}")
        e(f"v_lshrrev_b32 v{t}, 5, v{RK+i}\nv_mad_u32_u24 v{t}, v{aR+i}, 5, v{t}\nv_mad_u32_u24 v{t}, v{t}, s{sB_}, v{t+7}")
        e(f"s_andn2_b64 exec, {s(sM+2*i,2)}, vcc\nds_write_b32 v{t+6}, v{vOne} offset:{L_FLAG}")
        e(f"s_and_b64 {s(sM+2*i,2)}, {s(sM+2*i,2)}, vcc\ns_mov_b64 exec, {s(sM+2*i,2)}")
        e(f"v_or_b32 v{vDone}, {1<<i}, v{vDone}")
        e(f"v_and_b32 v{t+1}, 31, v{RK+i}\nv_lshl_add_u32 v{aR+i}, v{t+1}, 4, v{t}")
        e(f"v_lshrrev_b32 v{t+2}, 3, v{t+1}\nv_lshl_add_u32 v{t+2}, v{t+2}, 6, v{t}\nv_and_b32 v{t+3}, 7, v{t+1}\nv_lshl_add_u32 v{t+2}, v{t+3}, 2, v{t+2}")
        e(f"v_and_b32 v{t+3}, 4, v{t+1}\nv_xor_b32 v{t+3}, 4, v{t+3}\nv_lshlrev_b32 v{t+3}, 5, v{t+3}\nv_lshl_or_b32 v{t+3}, v{w+1}, 8, v{t+3}")
        e(f"ds_write_b32 v{t+2}, v{t+3} offset:{512+32}")
        e(f"v_and_b32 v{t+2}, 13, v{t+1}\nv_lshl_add_u32 v{t}, v{t+2}, 4, v{t}\nv_lshrrev_b32 v{t+2}, 4, v{t+1}\nv_lshl_add_u32 v{t}, v{t+2}, 3, v{t}")
        e(f"v_and_b32 v{t+2}, 2, v{t+1}\nv_lshl_add_u32 v{aW4+i}, v{t+2}, 1, v{t}")
        e("s_mov_b64 exec, -1")
    e(f"s_add_u32 s{sA}, s{sBeta}, 256\ns_cmp_le_u32 s{sTot}, s{sA}\ns_cbranch_scc1 K2_NOMORE")
    e(f"ds_write_b32 v{t+6}, v{vOne} offset:{L_FLAG+4}")
    e("K2_NOMORE:")
    e("s_waitcnt lgkmcnt(0)\ns_barrier")
    st(8)
    e(f"v_and_b32 v{t}, 31, v{vL}\nv_lshlrev_b32 v{t}, 2, v{t}\nds_read_b32 v{t}, v{t} offset:{L_CNT}\ns_waitcnt lgkmcnt(0)")
    e(f"v_readlane_b32 s{sPend}, v{t}, 16\nv_readlane_b32 s{sMore}, v{t}, 17")
    for g in range(4):
        e(f"s_add_u32 s{sA}, s{sT}, {4*g}\nv_readlane_b32 s{sCn+g}, v{t}, s{sA}")
    for g in range(4):
        e(f"s_min_u32 s{sCn+g}, s{sCn+g}, {CAP}\ns_add_u32 s{sA}, s{sCn+g}, 31\ns_lshr_b32 s{sA}, s{sA}, 5\ns_max_u32 s{sA}, s{sA}, 1")
        e(f"s_add_u32 s{sCu+g}, s{sA}, " + ("0" if g == 0 else f"s{sCu+g-1}"))
    e(f"s_mov_b32 s{sNT}, s{sCu+3}\ns_sub_u32 s{sA}, s{sNT}, 1\nv_min_u32 v{t}, s{sA}, v{vL}")
    e(f"v_mov_b32 v{t+1}, v{t}\nv_mov_b32 v{t+2}, s{sCn}\nv_mov_b32 v{t+3}, 0")
    for g in range(1, 4):
        e(f"v_cmpx_le_u32 vcc, s{sCu+g-1}, v{t}")
        e(f"v_subrev_u32 v{t+1}, s{sCu+g-1}, v{t}\nv_mov_b32 v{t+2}, s{sCn+g}\nv_mov_b32 v{t+3}, {20*g}")
    e("s_mov_b64 exec, -1")
    e(f"s_mul_i32 s{sA}, s{sT}, 5\nv_add3_u32 v{t+3}, v{t+3}, v{t+1}, s{sA}\nv_mul_u32_u24 v{t+3}, {TB}, v{t+3}\nv_add_u32 v{vDesc}, {L_TILES}, v{t+3}")
    e(f"v_lshlrev_b32 v{t+4}, 5, v{t+1}\nv_sub_u32 v{t+2}, v{t+2}, v{t+4}")
    e(f"v_add_u32 v{t+4}, 7, v{t+2}\nv_lshrrev_b32 v{t+4}, 3, v{t+4}\nv_med3_u32 v{t+4}, v{t+4}, 1, 4\nv_or_b32 v{t+3}, v{t+4}, v{vDesc}")
    e(f"v_cmp_lt_u32 vcc, 32, v{t+2}\ns_nop 0")
    e(f"v_mov_b32_dpp v{vDesc}, v{t+3} wave_shl:1 row_mask:0xf bank_mask:0xf")
    e(f"v_readlane_b32 s{sD}, v{t+3}, 0\nv_readlane_b32 s{sB1}, v{t+3}, 1")
    e(f"v_mov_b32_dpp v{t+4}, v{vDesc} wave_shl:1 row_mask:0xf bank_mask:0xf")
    e(f"v_and_b32 v{t+5}, 4, v{vDesc}\nv_lshlrev_b32 v{t+5}, 2, v{t+5}\nv_cndmask_b32_e64 v{t+5}, 8, v{t+5}, vcc")
    e(f"v_and_b32 v{t+4}, 0xff00, v{t+4}\nv_lshl_or_b32 v{vDesc}, v{t+4}, 16, v{vDesc}\nv_or_b32 v{vDesc}, v{vDesc}, v{t+5}")
    e(f"s_and_b32 s{sB0}, s{sD}, 0xff00\ns_and_b32 s{sB1}, s{sB1}, 0xff00")
    def idx_reads(Sx):
        for q in range(4):
            e(f"ds_read_b128 {v(RAW+16*Sx+4*q,4)}, v{aI} offset:{64*q}")
    def row_loads(Sx, lo=0, hi=16):
        for r in range(lo, hi):
            if G.SAFE: e(f"v_and_b32 v{RAW+16*Sx+r}, 0x7fffff, v{RAW+16*Sx+r}")
            if G.EXP & 1: continue
            if G.EXP == 2: e(f"v_lshl_add_u32 v{RAW+16*Sx+r}, v{vL}, 2, v{RAW+16*Sx+r}")
            e(f"buffer_load_dword v{RAW+16*Sx+r}, v{RAW+16*Sx+r}, {s(rB,4)}, 0 offen")
    e(f"v_add_u32 v{aI}, s{sB0}, v{cI}"); idx_reads(0)
    e(f"v_add_u32 v{aI}, s{sB1}, v{cI}"); idx_reads(1)
    e("s_waitcnt lgkmcnt(4)"); row_loads(0)
    e("s_waitcnt lgkmcnt(0)"); row_loads(1)
    e(f"s_cmp_lg_u32 s{sRound}, 0\ns_cbranch_scc1 K2_NOGEMM")
    def h_addr(dst, lreg):
        e(f"v_add_u32 v{lreg}, s{sT}, v{lreg}\nv_min_u32 v{lreg}, 99, v{lreg}")
        e(f"v_bfe_u32 v{t+1}, v{lreg}, 2, 4\nv_lshrrev_b32 v{t+2}, 5, v{vL}\nv_xor_b32 v{t+1}, v{t+1}, v{t+2}\nv_lshlrev_b32 v{t+1}, 4, v{t+1}")
        e(f"v_lshl_add_u32 v{dst}, v{lreg}, 8, v{t+1}\nv_add_u32 v{dst}, {L_H}, v{dst}")
    e(f"v_and_b32 v{t}, 3, v{vL}\nv_lshlrev_b32 v{t}, 4, v{t}\nv_bfe_u32 v{t+1}, v{vL}, 3, 1\nv_lshl_add_u32 v{t}, v{t+1}, 6, v{t}")
    e(f"v_bfe_u32 v{t+1}, v{vL}, 2, 1\nv_lshl_add_u32 v{t}, v{t+1}, 3, v{t}\nv_bfe_u32 v{t+1}, v{vL}, 4, 1\nv_lshl_add_u32 v{t}, v{t+1}, 2, v{t}")
    h_addr(u, t)
    tr_addr(e, u + 2, vL, sHF, L_WD, t, t + 1, t + 2, sA)
    gemm(e, T, u, u + 2, M, DH, t + 3)
    e(f"v_and_b32 v{t}, 31, v{vL}\nv_lshlrev_b32 v{t}, 2, v{t}")
    h_addr(u, t)
    e(f"v_bfe_u32 v{t}, v{vL}, 2, 2\nv_lshlrev_b32 v{t+1}, 8, v{t}\nv_lshrrev_b32 v{t+2}, 5, v{vL}\nv_lshl_add_u32 v{t+1}, v{t+2}, 11, v{t+1}")
    e(f"v_and_b32 v{t+2}, 1, v{t}\nv_xor_b32 v{t+2}, s{sHF}, v{t+2}\nv_lshl_add_u32 v{t+1}, v{t+2}, 7, v{t+1}")
    e(f"v_bfe_u32 v{t+2}, v{vL}, 4, 1\nv_lshl_add_u32 v{t+1}, v{t+2}, 6, v{t+1}\nv_and_b32 v{t+2}, 3, v{vL}\nv_lshl_add_u32 v{t+1}, v{t+2}, 4, v{t+1}")
    e(f"v_lshrrev_b32 v{t+2}, 1, v{t}\nv_lshl_add_u32 v{t+1}, v{t+2}, 3, v{t+1}\nv_xor_b32 v{t+2}, 8, v{t+1}")
    e(f"v_add_u32 v{u+2}, {L_WT}, v{t+1}\nv_add_u32 v{u+3}, {L_WT}, v{t+2}")
    gemm(e, Z, u, u + 2, M, DH, t + 3)
    e(f"s_mov_b32 s{sA}, {hex(G.LOG2E)}")
    for bl in range(2):
        a = T + 16 * bl
        for r in range(16):
            if r & 7 != 7 and bl:
                e(f"v_mul_f32 v{a+r}, s{sA}, v{a+r}")
        for m in range(3):
            e(f"v_cvt_pk_bf16_f32 v{R+4*bl+m}, v{a+8+2*m}, v{a+8+2*m+1}\nv_cvt_pk_bf16_f32 v{Q+4*bl+m}, v{a+2*m}, v{a+2*m+1}")
        e(f"v_cvt_pk_bf16_f32 v{R+4*bl+3}, v{a+14}, v{Q+4*bl+3}\nv_cvt_pk_bf16_f32 v{Q+4*bl+3}, v{a+6}, v{Q+4*bl+3}")
    for r in range(32):
        e(f"v_mul_f32 v{Z+r}, s{sA}, v{Z+r}")
    e("s_barrier")
    e("K2_NOGEMM:")
    e(f"s_getpc_b64 {s(sT2,2)}\nL_PC:\ns_add_u32 s{sT2}, s{sT2}, silu_table-L_PC\ns_addc_u32 s{sT2+1}, s{sT2+1}, 0")
    e(f"v_lshlrev_b32 v{t}, 4, v0\nv_mov_b32 v{t+1}, 0\nv_lshl_add_u64 {v(t,2)}, {v(t,2)}, 0, {s(sT2,2)}")
    e(f"s_mov_b32 s{sT2}, 8192\ns_mov_b32 s{sT2+1}, 0\ns_lshl_b32 s{sA}, s{sW}, 10\ns_add_u32 m0, s{sA}, {L_LUT}")
    for i in range(13):
        if i == 12: e(f"s_cmp_gt_u32 s{sW}, 1\ns_cbranch_scc1 K2_LUTOK")
        e(f"s_nop 0\nglobal_load_lds_dwordx4 {v(t,2)}, off")
        if i < 12: e(f"v_lshl_add_u64 {v(t,2)}, {v(t,2)}, 0, {s(sT2,2)}\ns_add_u32 m0, m0, 8192")
    e("K2_LUTOK:")
    st(9)
    e("s_waitcnt vmcnt(44)")
    e(f"v_mov_b32 v{u+7}, 1.0")
    for i in range(4):
        w = DL + 4 * i + 2
        ps, pd = PS + 2 * i, PD + 2 * i
        e(f"v_and_b32 v{t}, 1, v{w+1}\nv_lshlrev_b32 v{t}, 4, v{t}\nv_lshrrev_b64 {v(ps,2)}, v{t}, {v(ps,2)}")
        e(f"v_and_b32 v{t}, 1, v{LL+i}\nv_lshlrev_b32 v{t}, 4, v{t}\nv_lshrrev_b64 {v(pd,2)}, v{t}, {v(pd,2)}")
        e(f"v_lshlrev_b32 v{t}, 16, v{pd}\nv_lshlrev_b32 v{t+1}, 16, v{ps}\nv_sub_f32 v{t}, v{t}, v{t+1}")
        e(f"v_and_b32 v{t+1}, s{sHiM}, v{pd}\nv_and_b32 v{t+2}, s{sHiM}, v{ps}\nv_sub_f32 v{t+1}, v{t+1}, v{t+2}")
        e(f"v_lshlrev_b32 v{t+2}, 16, v{pd+1}\nv_lshlrev_b32 v{t+3}, 16, v{ps+1}\nv_sub_f32 v{t+2}, v{t+2}, v{t+3}")
        e(f"v_cvt_pk_bf16_f32 v{u}, v{u+7}, v{t}\nv_cvt_pk_bf16_f32 v{u+1}, v{t+1}, v{t+2}")
        e(f"v_and_b32 v{t}, s{sHiM}, v{u}\nv_lshlrev_b32 v{t+1}, 16, v{u+1}\nv_and_b32 v{t+2}, s{sHiM}, v{u+1}")
        e(f"v_mul_f32 v{t}, v{t}, v{t}\nv_mul_f32 v{t+1}, v{t+1}, v{t+1}\nv_mul_f32 v{t+2}, v{t+2}, v{t+2}")
        e(f"v_cvt_pk_bf16_f32 v{t}, v{t}, v{t}\nv_cvt_pk_bf16_f32 v{t+1}, v{t+1}, v{t+2}")
        e(f"v_and_b32 v{t}, s{sHiM}, v{t}\nv_and_b32 v{t+2}, s{sHiM}, v{t+1}\nv_lshlrev_b32 v{t+1}, 16, v{t+1}")
        e(f"v_add_f32 v{t}, v{t}, v{t+1}\nv_add_f32 v{t}, v{t}, v{t+2}\nv_cvt_pk_bf16_f32 v{t}, v{t}, v{t}")
        e(f"v_and_b32 v{t+1}, 0x70, v{LL+i}\nv_add_u32 v{t+1}, 16, v{t+1}\nv_and_or_b32 v{t}, v{t}, s{sHiM}, v{t+1}")
        e(f"v_and_b32 v{t+1}, 8, v{LL+i}\nv_cmp_ne_u32 vcc, 0, v{t+1}\nv_and_b32 v{t+1}, 4, v{LL+i}\nv_lshlrev_b32 v{t+1}, 2, v{t+1}")
        e(f"v_cndmask_b32 v{w}, v{u}, v{u+1}, vcc\nv_cndmask_b32 v{w+1}, v{u+1}, v{u}, vcc")
        e(f"v_alignbit_b32 v{w}, v{w}, v{w}, v{t+1}\nv_alignbit_b32 v{w+1}, v{w+1}, v{w+1}, v{t+1}")
        e(f"s_mov_b64 exec, {s(sM+2*i,2)}")
        e(f"ds_write_b128 v{aR+i}, {v(DL+4*i,4)}\nds_write_b32 v{aW4+i}, v{t} offset:512")
        e("s_mov_b64 exec, -1")
    Rn = types.SimpleNamespace(**locals())
    mainloop.gswitch(e, Rn, 0)
    e(f"s_mov_b32 s{sGQ}, 0\ns_mov_b32 s{sGM}, 0x11111111\ns_mov_b32 s{sGM+1}, 0x11111111\ns_mov_b32 s{sI}, 0")
    e(f"s_mov_b32 s{sPM+1}, 0xffffff\ns_cmp_lt_u32 s{sT}, 2\ns_cselect_b32 s{sPM}, 0xfffffff, s{sPM+1}\ns_mov_b32 s{sPM+1}, s{sPM}")
    for bl in range(2): e(f"{MFMA} {v(T+16*bl,16)}, {v(ZR,4)}, {v(SEL,4)}, 0")
    e("s_waitcnt vmcnt(0) lgkmcnt(0)\ns_barrier")
    e(f"v_add_u32 v{aE}, s{sB0}, v{cE}\nv_add_u32 v{aX}, s{sB0}, v{cX}\nds_read_b32 v{vWt}, v{aE}\nds_read_b128 {v(NID,4)}, v{aX} offset:512\ns_waitcnt lgkmcnt(1)")
    e(f"v_perm_b32 v{aE}, v{vWt}, v{aE}, v{cM}\nds_read_b128 {v(F,4)}, v{aE}\ns_waitcnt lgkmcnt(0)")
    e(f"v_bfi_b32 v{F+3}, s{sHiM}, v{vWt}, v{F+3}")
    st(10)
    if PRIO: e("s_setprio 3")
    e("s_branch M_SEL")
    mainloop.main_loop(e, Rn)
    e("K2_MAINEND:")
    st(11)
    WB = RAW
    assert DL == RAW + 32 and DH == RAW + 48
    e(f"v_lshlrev_b32 v{u}, 4, v{vL}\ns_waitcnt vmcnt(0)")
    e(f"s_movk_i32 s{sA}, 4096\ns_movk_i32 s{sB_}, 12288")
    for k in range(16):
        e(f"buffer_load_dwordx4 {v(WB+4*k,4)}, v{u}, {s(rX,4)}, {['0', f's{sA}', f's{sO1}', f's{sB_}'][k>>2]} offen offset:{(k&3)*1024}")
    for r in range(13):
        e(f"buffer_load_dword v{T+16+r}, v{vSt}, {s(rH,4)}, {['0', f's{sO1}', f's{sO2}', f's{sO3}'][r>>2]} offen offset:{(r&3)*1024}")
    e(f"s_lshl_b32 s{sA}, s{sW}, 12\nv_add_u32 v{u}, s{sA}, v{u}\nv_xor_b32 v{u+1}, 4096, v{u}")
    e("s_waitcnt lgkmcnt(0)\ns_barrier")
    for k in range(4):
        e(f"ds_write_b128 v{u}, {v(MC+4*k,4)} offset:{L_TILES+1024*k}")
    e("s_waitcnt lgkmcnt(0)\ns_barrier")
    for k in range(4):
        e(f"ds_read_b128 {v(T+4*k,4)}, v{u+1} offset:{L_TILES+1024*k}")
    e(f"s_cmp_eq_u32 s{sHF}, 0\ns_waitcnt vmcnt(13) lgkmcnt(0)\ns_cbranch_scc0 K2_FIN1")
    for hf in range(2):
        if hf: e("K2_FIN1:")
        for ks in range(8):
            a = (MC if (ks >> 2) == hf else T) + 4 * (ks & 3)
            for par in range(2):
                e(f"{MFMA} {v(Z+16*par,16)}, {v(a,4)}, {v(WB+32*par+4*ks,4)}, {v(Z+16*par,16)}")
        if not hf: e("s_branch K2_FIN2")
    e("K2_FIN2:")
    e(f"s_or_b32 s{sA}, s{sPend}, s{sMore}\ns_cmp_eq_u32 s{sA}, 0\ns_cbranch_scc1 K2_FINAL")
    e(f"s_add_u32 s{sRound}, s{sRound}, 1\ns_cmp_lg_u32 s{sPend}, 0\ns_cbranch_scc1 K2_AGAIN")
    e(f"s_add_u32 s{sBeta}, s{sBeta}, 256\nv_mov_b32 v{vDone}, 0")
    e("K2_AGAIN:")
    mainloop.grestore(e, Rn)
    e("s_waitcnt vmcnt(0) lgkmcnt(0)\ns_barrier\ns_branch K2_ROUND")
    e("K2_FINAL:")
    st(12)
    e(f"v_min_u32 v{u}, 146, v0\nv_lshlrev_b32 v{u+1}, 3, v{u}\nv_lshlrev_b32 v{u}, 2, v{u}")
    e(f"ds_read_b64 {v(u+2,2)}, v{u+1} offset:{L_PACC}\nds_read_b32 v{u+4}, v{u} offset:{L_POSL}")
    e(f"s_mul_i32 s{sA}, s2, 588")
    srd(e, rPOS, sOUT, N * 6, off=N * 256)
    e("s_waitcnt lgkmcnt(0)")
    e(f"v_lshlrev_b32 v{u+5}, 16, v{u+4}\nv_and_b32 v{u+4}, s{sHiM}, v{u+4}\nv_add_f32 v{u+2}, v{u+2}, v{u+5}\nv_add_f32 v{u+3}, v{u+3}, v{u+4}")
    e(f"v_cvt_pk_bf16_f32 v{u+2}, v{u+2}, v{u+3}\nv_add_u32 v{u}, s{sA}, v{u}")
    e(f"s_cmp_gt_u32 s{sW}, 2\ns_cbranch_scc1 K2_NOPOS")
    e(f"buffer_store_dword v{u+2}, v{u}, {s(rPOS,4)}, 0 offen")
    e("K2_NOPOS:")
    e(f"s_mov_b32 s{sA}, {hex(G.LN2)}\ns_waitcnt vmcnt(1)")
    for r0 in range(0, 13, 4):
        rs = list(range(r0, min(r0 + 4, 13)))
        regs = [Z + r for r in rs] + [Z + 16 + r for r in rs]
        n = len(regs)
        for k, r in enumerate(regs): e(f"v_exp_f32 v{t+k}, -v{r}")
        e("s_nop 0")
        for k in range(n): e(f"v_add_f32 v{t+k}, 1.0, v{t+k}")
        for k in range(n): e(f"v_rcp_f32 v{t+k}, v{t+k}")
        e("s_nop 0")
        for k, r in enumerate(regs): e(f"v_mul_f32 v{r}, v{r}, v{t+k}")
        if r0 == 12: e("s_waitcnt vmcnt(12)")
        for r in rs:
            h = T + 16 + r
            e(f"v_lshlrev_b32 v{t}, 16, v{h}\nv_and_b32 v{h}, s{sHiM}, v{h}")
            e(f"v_fmac_f32 v{t}, s{sA}, v{Z+r}\nv_fmac_f32 v{h}, s{sA}, v{Z+16+r}")
            e(f"v_cvt_pk_bf16_f32 v{h}, v{t}, v{h}")
            e(f"buffer_store_dword v{h}, v{vSt}, {s(rO,4)}, {['0', f's{sO1}', f's{sO2}', f's{sO3}'][r>>2]} offen offset:{(r&3)*1024}")
    st(13)
    if G.STAMP: e("s_waitcnt vmcnt(0)")
    st(14)
    G.stamp_out(e, vStamp, t, vL, sW, sWS, sSt, 5, 15)
    e("K2_END:\ns_endpgm")
    return V.hi, S.hi, lds
```

```python
import numpy as np, warnings
warnings.simplefilter("ignore")
NLUT = 0x8000 + 134 * 128
def bf16_rne(x):
    x = np.asarray(x, np.float64)
    with np.errstate(over="ignore"):
        f = x.astype(np.float32)
    b = f.view(np.uint32).astype(np.uint64)
    r = ((b + 0x7fff + ((b >> 16) & 1)) >> 16).astype(np.uint16)
    r[np.isnan(x)] = 0x7fc0
    return r
def table():
    t = np.arange(NLUT, dtype=np.uint32)
    mid = ((t << 16) | 0x8000).view(np.float32).astype(np.float64)
    mid[(t & 0x7fff) == 0] = 0.0
    mid[t == 0x7f80] = np.inf
    with np.errstate(over="ignore", invalid="ignore"):
        y = np.log2(np.e) * mid / (1.0 + np.exp(-mid))
    return bf16_rne(y)
def asm_lines():
    q = table().view(np.uint64)
    return [".quad " + ",".join(hex(int(x)) for x in q[i:i+8]) for i in range(0, len(q), 8)]
if __name__ == "__main__":
    t = table(); print(len(t), t[0x3f80], t[0xbf80], hex(t[0x7f7f]), hex(t[-1]))
    print(sum(len(l) + 1 for l in asm_lines()))
```

```python
from asmlib import *
MFMA = "v_mfma_f32_32x32x16_bf16"

class DSQ:
    def __init__(self, e):
        self.e, self.q, self.done = e, [], 0
    def issue(self, name, text):
        self.e(text); self.q.append(name)
        assert len(self.q) - self.done <= 15, self.q
    def wait(self, name, extra=""):
        k = max(i for i, n in enumerate(self.q) if n == name) + 1
        if k > self.done:
            self.e(f"s_waitcnt lgkmcnt({len(self.q)-k})")
            self.done = k

def tile_body(e, R, Sx, nq):
    raw = R.RAW + 16 * Sx
    DL, DH, T, X, F, M, NID, t = R.DL, R.DH, R.T, R.X, R.F, R.M, R.NID, R.t
    q = DSQ(e)
    def xor(k): e(f"v_xor_b32_sdwa v{R.aX}, v{NID+k}, v{R.cN} dst_sel:WORD_1 dst_unused:UNUSED_PRESERVE src0_sel:WORD_0 src1_sel:WORD_0")
    def tr(k): q.issue("X", f"ds_read_b64_tr_b16 {v(X+2*k,2)}, v{R.aX} offset:{8+256*(k>>1)+32*(k&1)}")
    def sel(k): e(f"{MFMA} {v(DL,16)}, {v(R.SEL+4*k,4)}, {v(raw+4*k,4)}, {v(DL,16)}")
    def E(k, ms=range(4)):
        if k < nq and R.G.EXP & 8:
            for m in ms: e(f"v_mov_b32 v{t+4*(k&1)+m}, v{DH+4*k+m}")
        elif k < nq:
            for m in ms: e(f"v_exp_f32 v{t+4*(k&1)+m}, -v{DH+4*k+m}")
    def A(k):
        if k < nq:
            for h in (0, 2): e(f"v_pk_add_f32 {v(t+4*(k&1)+h,2)}, {v(t+4*(k&1)+h,2)}, 1.0 op_sel_hi:[1,0]")
    def Rc(k):
        if k < nq and R.G.EXP & 8:
            for m in range(4): e(f"v_mov_b32 v{t+4*(k&1)+m}, v{t+4*(k&1)+m}")
        elif k < nq:
            for m in range(4): e(f"v_rcp_f32 v{t+4*(k&1)+m}, v{t+4*(k&1)+m}")
    def U(k):
        if k < nq:
            for h in (0, 2): e(f"v_pk_mul_f32 {v(DH+4*k+h,2)}, {v(DH+4*k+h,2)}, {v(t+4*(k&1)+h,2)}")
    def C(st):
        for m in range(4): e(f"v_cvt_pk_bf16_f32 v{M+m}, v{DH+8*st+m}, v{DH+8*st+4+m}")
    def LA(k):
        if k < nq:
            for m in range(4):
                r = DL + 4 * k + m
                e(f"v_lshlrev_b32_sdwa v{r}, 1, v{r} dst_sel:DWORD dst_unused:UNUSED_PAD src0_sel:DWORD src1_sel:WORD_1")
    def LR(k):
        if k < nq:
            for m in range(4):
                r = DL + 4 * k + m
                a = R.ZR if R.G.EXP & 4 else r
                q.issue(f"L{k}", f"ds_read_u16{'_d16_hi' if k&1 else ''} v{r}, v{a} offset:{R.L_LUT}")
    def S2l(k):
        if k < nq:
            q.wait(f"L{k}")
            e(f"{MFMA} {v(T,16)}, {v(DL+4*k,4)}, {v(X+4*(k>>1),4)}, {v(T,16)}")
    def S2h(st): e(f"{MFMA} {v(T+16,16)}, {v(M,4)}, {v(X+4*st,4)}, {v(T+16,16)}")
    def G(k): R.row_loads(Sx, 4 * k, 4 * k + 4)

    xor(0)
    e("s_waitcnt vmcnt(16)")
    e(f"{MFMA} {v(DH,16)}, {v(F,4)}, {v(R.P+4,4)}, {v(raw,16)}")
    tr(0); xor(1)
    e(f"v_readlane_b32 s{R.sD}, v{R.vDesc}, s{R.sI}")
    e(f"{MFMA} {v(DL,16)}, {v(F,4)}, {v(R.P,4)}, 0")
    tr(1)
    e(f"s_lshr_b32 s{R.sB2}, s{R.sD}, 16\ns_and_b32 s{R.sB1}, s{R.sD}, 0xff00")
    if nq > 2: xor(2)
    e(f"v_add_u32 v{R.aI}, s{R.sB2}, v{R.cI}")
    sel(0)
    if nq > 2: tr(2); xor(3)
    e(f"v_add_u32 v{R.aE}, s{R.sB1}, v{R.cE}")
    if nq <= 2: e(f"s_add_u32 s{R.sI}, s{R.sI}, 1\ns_nop 1")
    E(0, [0, 1])
    if nq > 1: sel(1)
    if nq > 2: tr(3)
    e(f"v_add_u32 v{R.aX}, s{R.sB1}, v{R.cX}")
    E(0, [2, 3]); E(1, [0])
    if nq > 2: sel(2)
    q.issue("NID", f"ds_read_b128 {v(NID,4)}, v{R.aX} offset:512")
    q.issue("Wt", f"ds_read_b32 v{R.vWt}, v{R.aE}")
    E(1, [1, 2, 3])
    if nq > 3: sel(3)
    for k in range(4):
        q.issue("IDX", f"ds_read_b128 {v(raw+4*k,4)}, v{R.aI} offset:{64*k}")
    A(0); A(1); Rc(0)
    if nq > 2: e(f"s_add_u32 s{R.sI}, s{R.sI}, 1")
    q.wait("IDX")
    G(0)
    e(f"v_perm_b32 v{R.aE}, v{R.vWt}, v{R.aE}, v{R.cM}")
    LA(0); e("s_nop 0"); LR(0)
    Rc(1)
    LA(1)
    if nq > 1: e("s_nop 0")
    LR(1)
    U(0); U(1); C(0)
    G(1)
    S2h(0)
    q.issue("F", f"ds_read_b128 {v(F,4)}, v{R.aE}")
    if nq > 2:
        E(2); LA(2)
        S2l(0); LR(2)
        E(3); LA(3)
        if nq == 3: A(2); Rc(2)
        S2l(1); LR(3)
        G(2)
        if nq > 3: A(2); A(3); Rc(2)
        S2l(2); G(3)
        Rc(3); U(2); U(3); C(1)
        e(f"v_bfi_b32 v{F+3}, s{R.sHiM}, v{R.vWt}, v{F+3}")
        S2l(3)
        if nq == 3: e("s_nop 0")
        S2h(1)
    else:
        G(2)
        S2l(0); G(3)
        S2l(1)
        q.wait("F")
        e(f"v_bfi_b32 v{F+3}, s{R.sHiM}, v{R.vWt}, v{F+3}")
    assert q.done == len(q.q), (nq, q.q, q.done)

def gswitch(e, R, g):
    src = R.Q if g in (0, 2) else R.R
    if g < 2:
        e("s_mov_b32 exec_hi, 0")
        for r in range(0, 8, 2): e(f"v_mov_b64 {v(R.P+r,2)}, {v(src+r,2)}")
        e("s_mov_b32 exec_hi, -1")
    else:
        for r in range(8): e(f"v_permlane32_swap_b32 v{src+r}, v{R.P+r}")

def grestore(e, R):
    for src in (R.R, R.Q):
        for r in range(8): e(f"v_permlane32_swap_b32 v{src+r}, v{R.P+r}")
        e("s_nop 1")

def main_loop(e, R):
    T, DL, u = R.T, R.DL, R.u
    for Sx in range(2):
        e(f"M_FULL{Sx}:")
        tile_body(e, R, Sx, 4)
        e(f"s_bitcmp1_b32 s{R.sD}, 4")
        e("s_cbranch_scc0 M_DISP" if Sx == 0 else "s_cbranch_scc1 M_FULL0")
    e("M_DISP:")
    e(f"s_bitcmp0_b32 s{R.sD}, 3\ns_cbranch_scc1 M_SEL")
    e("M_FLUSH:")
    for k in range(4): e(f"ds_read_b128 {v(DL+16+4*k,4)}, v{R.cW} offset:{R.L_WX+128+32*k}")
    e(f"s_lshl_b32 s{R.sA}, s{R.sGQ}, 2\ns_mul_i32 s{R.sB_}, s{R.sGQ}, 48")
    e(f"v_xor_b32 v{u}, s{R.sA}, v{R.cC}\nv_add3_u32 v{u}, v{u}, s{R.sB_}, v{R.cP}")
    e(f"s_add_u32 s{R.sGQ}, s{R.sGQ}, 1")
    for k in range(4): e(f"ds_read_b128 {v(DL+4*k,4)}, v{R.cW} offset:{R.L_WX+32*k}")
    e(f"s_mov_b64 exec, {s(R.sGM,2)}")
    for k in range(16): e(f"v_cvt_pk_bf16_f32 v{R.MC+k}, v{T+2*k}, v{T+2*k+1}")
    e(f"s_andn2_b64 exec, {s(R.sPM,2)}, {s(R.sGM,2)}")
    e("s_waitcnt lgkmcnt(0)")
    for k in range(16):
        acc = u + 2 + 2 * (k & 1)
        if k < 2: e(f"v_pk_mul_f32 {v(acc,2)}, {v(T+2*k,2)}, {v(DL+2*k,2)}")
        else: e(f"v_pk_fma_f32 {v(acc,2)}, {v(T+2*k,2)}, {v(DL+2*k,2)}, {v(acc,2)}")
    e(f"v_pk_add_f32 {v(u+2,2)}, {v(u+2,2)}, {v(u+4,2)}\nv_add_f32 v{u+2}, v{u+2}, v{u+3}")
    e(f"s_lshl_b64 {s(R.sGM,2)}, {s(R.sGM,2)}, 1\ns_mov_b32 s{R.sPM}, 0xffffff")
    e(f"ds_add_f32 v{u}, v{u+2} offset:{R.L_PACC-4}")
    e(f"s_mov_b64 exec, -1\ns_mov_b32 s{R.sPM+1}, 0xffffff")
    e(f"s_cmp_eq_u32 s{R.sGQ}, 4\ns_cbranch_scc1 M_END")
    for bl in range(2): e(f"{MFMA} {v(T+16*bl,16)}, {v(R.ZR,4)}, {v(R.SEL,4)}, 0")
    e(f"s_cmp_eq_u32 s{R.sGQ}, 2\ns_cbranch_scc1 M_G2\ns_cmp_eq_u32 s{R.sGQ}, 3\ns_cbranch_scc1 M_G3")
    for g in (1, 2, 3):
        if g > 1: e(f"M_G{g}:")
        if R.PRIO: e(f"s_setprio {3-g}")
        gswitch(e, R, g)
        if g < 3: e("s_branch M_SEL")
    e("M_SEL:")
    e(f"s_and_b32 s{R.sA}, s{R.sD}, 7\ns_bitcmp1_b32 s{R.sI}, 0\ns_cbranch_scc1 M_SEL1")
    for Sx in range(2):
        if Sx: e("M_SEL1:")
        e(f"s_cmp_eq_u32 s{R.sA}, 4\ns_cbranch_scc1 M_FULL{Sx}")
        e(f"s_cmp_eq_u32 s{R.sA}, 2\ns_cbranch_scc1 M_P2_{Sx}\ns_cmp_eq_u32 s{R.sA}, 1\ns_cbranch_scc1 M_P1_{Sx}")
        for nq in (3, 2, 1):
            if nq < 3: e(f"M_P{nq}_{Sx}:")
            tile_body(e, R, Sx, nq)
            e("s_branch M_FLUSH")
    e("M_END:")
    if R.PRIO: e("s_setprio 0")
```

```python
import sys, os
SAFE = int(os.environ.get("SAFE", "0"))
EXP = int(os.environ.get("EXP", "0"))
PRIO = int(os.environ.get("PRIO", "1"))
WSOFF = int(os.environ.get("WSOFF", "0")) << 20
STAMP = int(os.environ.get("STAMP", "0"))
def stamp(e, i, vS, sT):
    if STAMP:
        e(f"{'s_memtime' if STAMP == 2 else 's_memrealtime'} s[{sT}:{sT+1}]\ns_waitcnt lgkmcnt(0)\nv_writelane_b32 v{vS}, s{sT}, {i}")
def stamp_out(e, vS, vA, vL, sW, sWS, sT, lo, hi):
    if STAMP:
        e(f"s_lshl_b32 s{sT}, s2, 3\ns_add_u32 s{sT}, s{sT}, s{sW}\ns_lshl_b32 s{sT}, s{sT}, 6\ns_add_u32 s{sT}, s{sT}, 0x4000000")
        e(f"v_lshl_add_u32 v{vA}, v{vL}, 2, s{sT}\ns_mov_b64 exec, {hex(((1<<hi)-1) ^ ((1<<lo)-1))}")
        e(f"global_store_dword v{vA}, v{vS}, s[{sWS}:{sWS+1}]")
from asmlib import *

N, E, NPW, CH = 25000, 400000, 98, 1568
WS_B, WS_REC, WS_OFF, WS_WB = 256, 0x680000, 0xB80000, 0xBC0000
LOG2E, LN2 = 0x3fb8aa3b, 0x3f317218
MFMA = "v_mfma_f32_32x32x16_bf16"
HDR = open("standalone__cheap_equivariant_egnn__graph.s.ref").read().split("; Override launch")[0]

def kd(name, nv, ns):
    return f""".amdhsa_kernel {name}
.amdhsa_next_free_vgpr {nv}
.amdhsa_next_free_sgpr {ns}
.amdhsa_accum_offset {(nv+3)//4*4}
.amdhsa_group_segment_fixed_size 0
.amdhsa_kernarg_size 88
.amdhsa_user_sgpr_count 2
.amdhsa_user_sgpr_kernarg_segment_ptr 1
.amdhsa_system_sgpr_workgroup_id_x 1
.amdhsa_float_denorm_mode_32 3
.end_amdhsa_kernel"""

def srd(e, d, base, nrec, off=None, w3="0x20000", stride=0):
    if off is None:
        e(f"s_mov_b32 s{d}, s{base}")
        e(f"s_and_b32 s{d+1}, s{base+1}, 0xffff")
    else:
        e(f"s_add_u32 s{d}, s{base}, {off}")
        e(f"s_addc_u32 s{d+1}, s{base+1}, 0")
        e(f"s_and_b32 s{d+1}, s{d+1}, 0xffff")
    if stride:
        e(f"s_or_b32 s{d+1}, s{d+1}, {hex(stride << 16)}")
    e(f"s_mov_b32 s{d+2}, {nrec}")
    e(f"s_mov_b32 s{d+3}, {w3}")

def scan_dpp(e, op, r, t, full=True):
    for sh in (1, 2, 4, 8):
        e("s_nop 1")
        e(f"{op}_dpp v{r}, v{r}, v{r} row_shr:{sh} row_mask:0xf bank_mask:0xf bound_ctrl:1")
    e("s_nop 1")
    e(f"{op}_dpp v{r}, v{r}, v{r} row_bcast:15 row_mask:0xa bank_mask:0xf")
    if full:
        e("s_nop 1")
        e(f"{op}_dpp v{r}, v{r}, v{r} row_bcast:31 row_mask:0xc bank_mask:0xf")

P_H, P_POS, P_EA, P_SRC, P_DST, P_WE, P_WX, P_WH = 4, 6, 8, 10, 12, 14, 16, 18

def k1(e):
    L_H, L_W, L_HIST, L_BASE, L_STAGE = 0, 32768, 65536, 66560, 67584
    lds = L_STAGE + CH * 12
    S = Regs("s", 20, 100); V = Regs("v", 1, 128)
    sWS = S.alloc("ws", 2)
    rDST, rSRC, rEA, rH, rB, rREC = (S.alloc(n, 4) for n in ("dst", "src", "ea", "h", "b", "rec"))
    sW, sT, sHF, sA, sB_, sNV, sK = (S.alloc(n) for n in "w t hf a b nv k".split())
    sVal = S.alloc("val", 2); sWs_ = S.alloc("wes", 2); sOffp = S.alloc("offp", 2)
    sO1, sO2, sO3, sC = (S.alloc(n) for n in "o1 o2 o3 c".split())
    vL, vU, vO16, vO32, vT0, vT1, vT2, vT3, vH0, vH1, vWo, vOne = (V.alloc(n) for n in "l u o16 o32 t0 t1 t2 t3 h0 h1 wo one".split())
    vD = V.alloc("d", 4); vS = V.alloc("s", 4); vEA = V.alloc("ea", 8)
    vQ = V.alloc("q", 4); vR = V.alloc("r", 4); vC = V.alloc("c", 4); vP = V.alloc("p", 4)
    vWb = V.alloc("wb", 2); vWbA = V.alloc("wba")
    vAcc = V.alloc("acc", 32); vHA = V.alloc("ha", 8); vWf = V.alloc("wf", 16)
    vStamp = V.alloc("stamp"); sSt = S.alloc("stt", 2)
    vAW = V.alloc("aw", 2); vAH = V.alloc("ah"); vSt = V.alloc("st")

    e("k1_kernel:")
    e("s_cmp_ge_u32 s2, 256\ns_cbranch_scc1 K1_END")
    stamp(e, 0, vStamp, sSt)
    e(f"s_load_dwordx16 s[4:19], s[0:1], 0\ns_load_dwordx2 {s(sWS,2)}, s[0:1], 80")
    e(f"v_and_b32 v{vL}, 63, v0\nv_lshrrev_b32 v{vT0}, 6, v0\nv_mov_b32 v{vOne}, 1")
    e(f"v_readfirstlane_b32 s{sW}, v{vT0}")
    e(f"v_mov_b32 v{vT1}, 0\nv_lshlrev_b32 v{vT2}, 2, v0\nv_and_b32 v{vT2}, 0x3ff, v{vT2}")
    e(f"v_add_u32 v{vT2}, {L_HIST}, v{vT2}\nds_write_b32 v{vT2}, v{vT1}")
    e(f"s_mul_i32 s{sA}, s{sW}, 49\ns_mul_i32 s{sB_}, s2, 392\ns_add_u32 s{sA}, s{sA}, s{sB_}")
    e(f"v_add_u32 v{vU}, s{sA}, v{vL}\nv_lshlrev_b32 v{vO16}, 4, v{vU}\nv_lshlrev_b32 v{vO32}, 5, v{vU}")
    e(f"s_lshr_b32 s{sT}, s{sW}, 1\ns_and_b32 s{sHF}, s{sW}, 1")
    e(f"s_mul_i32 s{sA}, s2, {NPW}\ns_sub_u32 s{sNV}, {N}, s{sA}\ns_min_u32 s{sNV}, s{sNV}, {NPW}\ns_lshl_b32 s{sNV}, s{sNV}, 8")
    e(f"s_lshl_b32 s{sA}, s{sA}, 8")
    e(f"v_lshrrev_b32 v{vT0}, 4, v{vL}\nv_and_b32 v{vT1}, 15, v{vL}")
    e(f"v_xor_b32 v{vH0}, s{sW}, v{vT1}\nv_lshlrev_b32 v{vH0}, 4, v{vH0}\nv_lshl_or_b32 v{vH0}, v{vT0}, 8, v{vH0}\nv_xor_b32 v{vH1}, 128, v{vH0}")
    e(f"v_lshlrev_b32 v{vT2}, 2, v{vT0}\nv_xor_b32 v{vWo}, v{vT2}, v{vT1}\nv_lshlrev_b32 v{vWo}, 4, v{vWo}\nv_lshl_or_b32 v{vWo}, v{vT0}, 8, v{vWo}")
    e("s_waitcnt lgkmcnt(0)")
    if WSOFF: e(f"s_add_u32 s{sWS}, s{sWS}, {WSOFF}\ns_addc_u32 s{sWS+1}, s{sWS+1}, 0")
    srd(e, rDST, P_DST, E * 4); srd(e, rSRC, P_SRC, E * 4); srd(e, rEA, P_EA, E * 8)
    e("s_mov_b32 exec_hi, 0x1ffff")
    e(f"buffer_load_dwordx4 {v(vD,4)}, v{vO16}, {s(rDST,4)}, 0 offen")
    e(f"buffer_load_dwordx4 {v(vS,4)}, v{vO16}, {s(rSRC,4)}, 0 offen")
    e(f"buffer_load_dwordx4 {v(vEA,4)}, v{vO32}, {s(rEA,4)}, 0 offen")
    e(f"buffer_load_dwordx4 {v(vEA+4,4)}, v{vO32}, {s(rEA,4)}, 0 offen offset:16")
    e(f"s_mov_b32 s{sC}, {E//4}\nv_cmp_gt_u32 {s(sVal,2)}, s{sC}, v{vU}")
    e("s_mov_b32 exec_hi, -1")
    srd(e, rH, P_H, f"s{sNV}", off=f"s{sA}")
    e(f"s_add_u32 s{sA}, s{sA}, {WS_B}")
    srd(e, rB, sWS, f"s{sNV}", off=f"s{sA}")
    e(f"s_lshl_b32 s{sK}, s{sW}, 10")
    for i in range(4):
        e(f"s_add_u32 s{sA}, s{sK}, {i*8192}\ns_add_u32 m0, s{sA}, {L_H}\ns_nop 0")
        e(f"buffer_load_dwordx4 v{vH1 if i&1 else vH0}, {s(rH,4)}, s{sA} offen lds")
    srd(e, rDST, P_WE, 32768, off=128*256)
    for i in range(4):
        e(f"s_add_u32 s{sA}, s{sK}, {i*8192}\ns_add_u32 m0, s{sA}, {L_W}\ns_nop 0")
        e(f"buffer_load_dwordx4 v{vWo}, {s(rDST,4)}, s{sA} offen lds")
    e(f"s_lshl_b32 s{sA}, s2, 5\nv_and_b32 v{vT0}, 31, v{vL}\nv_add_u32 v{vWbA}, s{sA}, v{vT0}")
    e(f"v_bfe_u32 v{vT0}, v{vWbA}, 8, 3\nv_lshlrev_b32 v{vT0}, 4, v{vT0}")
    e(f"v_bfe_u32 v{vT1}, v{vWbA}, 0, 1\nv_lshl_add_u32 v{vT0}, v{vT1}, 1, v{vT0}")
    e(f"v_bfe_u32 v{vT1}, v{vWbA}, 1, 1\nv_lshl_add_u32 v{vT0}, v{vT1}, 3, v{vT0}")
    e(f"v_bfe_u32 v{vT1}, v{vWbA}, 7, 1\nv_lshl_add_u32 v{vT0}, v{vT1}, 2, v{vT0}")
    e(f"v_lshlrev_b32 v{vT0}, 8, v{vT0}")
    e(f"v_bfe_u32 v{vT1}, v{vWbA}, 2, 5\nv_lshl_add_u32 v{vT0}, v{vT1}, 2, v{vT0}")
    e(f"v_bfe_u32 v{vT1}, v{vWbA}, 11, 1\nv_lshl_add_u32 v{vT0}, v{vT1}, 1, v{vT0}")
    e(f"v_bfe_u32 v{vT1}, v{vWbA}, 12, 1\nv_lshl_add_u32 v{vT0}, v{vT1}, 7, v{vT0}")
    e(f"v_add_u32 v{vT0}, {128*256}, v{vT0}")
    e(f"global_load_ushort v{vWb}, v{vT0}, {s(P_WH,2)}\nglobal_load_ushort v{vWb+1}, v{vT0}, {s(P_WH,2)} offset:256")
    e(f"s_mul_i32 s{sA}, s2, {CH*12}\ns_add_u32 s{sA}, s{sA}, {WS_REC}")
    srd(e, rREC, sWS, CH * 12, off=f"s{sA}")
    e(f"s_lshl_b32 s{sA}, s2, 10\ns_add_u32 s{sA}, s{sA}, {WS_OFF}\ns_add_u32 s{sOffp}, s{sWS}, s{sA}\ns_addc_u32 s{sOffp+1}, s{sWS+1}, 0")
    e("s_waitcnt lgkmcnt(0)\ns_barrier")
    e(f"s_mov_b32 s{sC}, 42800\ns_mov_b32 s{sA}, {L_HIST}")
    e("s_waitcnt vmcnt(13)")
    stamp(e, 1, vStamp, sSt)
    for i in range(4):
        e(f"v_mul_u32_u24 v{vQ+i}, s{sC}, v{vD+i}\nv_lshrrev_b32 v{vQ+i}, 22, v{vQ+i}")
        e(f"v_mul_u32_u24 v{vT0}, {NPW}, v{vQ+i}\nv_sub_u32 v{vD+i}, v{vD+i}, v{vT0}")
        e(f"v_lshl_add_u32 v{vQ+i}, v{vQ+i}, 2, s{sA}")
    e(f"s_mov_b64 exec, {s(sVal,2)}")
    for i in range(4):
        e(f"ds_add_rtn_u32 v{vR+i}, v{vQ+i}, v{vOne}")
    e("s_mov_b64 exec, -1")
    e("s_waitcnt vmcnt(12)")
    for i in range(4):
        e(f"v_lshl_or_b32 v{vS+i}, v{vD+i}, 16, v{vS+i}")
    e(f"v_lshlrev_b32 v{vT3}, 4, v{vL}\nv_add_u32 v{vT2}, s{sA}, v{vT3}")
    e("s_waitcnt lgkmcnt(0)\ns_barrier")
    e(f"ds_read_b128 {v(vC,4)}, v{vT2}\ns_waitcnt lgkmcnt(0)")
    e(f"v_add_u32 v{vT0}, v{vC}, v{vC+1}\nv_add3_u32 v{vT0}, v{vT0}, v{vC+2}, v{vC+3}\nv_mov_b32 v{vT1}, v{vT0}")
    scan_dpp(e, "v_add_u32", vT1, None)
    e(f"v_sub_u32 v{vP}, v{vT1}, v{vT0}")
    for i in range(3):
        e(f"v_add_u32 v{vP+i+1}, v{vP+i}, v{vC+i}")
    e(f"ds_write_b128 v{vT2}, {v(vP,4)} offset:{L_BASE-L_HIST}")
    for i in range(4):
        e(f"ds_read_b32 v{vD+i}, v{vQ+i} offset:{L_BASE-L_HIST}")
    for i in range(4):
        e(f"v_lshl_or_b32 v{vC+i}, v{vC+i}, 16, v{vP+i}")
    e(f"s_cmp_lg_u32 s{sW}, 0\ns_cbranch_scc1 K1_NOOFF")
    e(f"global_store_dwordx4 v{vT3}, {v(vC,4)}, {s(sOffp,2)}")
    e("K1_NOOFF:")
    e(f"s_mov_b32 s{sA}, {L_STAGE}")
    e("s_waitcnt vmcnt(10) lgkmcnt(0)")
    for i in range(4):
        e(f"v_add_u32 v{vR+i}, v{vR+i}, v{vD+i}\nv_mad_u32_u24 v{vR+i}, v{vR+i}, 12, s{sA}")
    e(f"s_mov_b64 exec, {s(sVal,2)}")
    for i in range(4):
        e(f"ds_write2_b32 v{vR+i}, v{vEA+2*i}, v{vEA+2*i+1} offset0:0 offset1:1")
        e(f"ds_write_b32 v{vR+i}, v{vS+i} offset:8")
    e("s_mov_b64 exec, -1")
    e(f"v_and_b32 v{vT0}, 31, v{vL}\nv_lshrrev_b32 v{vT1}, 5, v{vL}")
    e(f"v_and_b32 v{vT2}, 15, v{vL}\nv_xor_b32 v{vT2}, v{vT2}, v{vT1}\nv_lshlrev_b32 v{vT2}, 4, v{vT2}")
    e(f"s_lshl_b32 s{sA}, s{sT}, 8\nv_lshl_add_u32 v{vAH}, v{vT0}, 10, v{vT2}\nv_add_u32 v{vAH}, s{sA}, v{vAH}")
    e(f"s_lshl_b32 s{sB_}, s{sHF}, 7\ns_add_u32 s{sA}, s{sA}, s{sB_}")
    e(f"v_lshlrev_b32 v{vSt}, 2, v{vT0}\nv_lshl_add_u32 v{vSt}, v{vT1}, 12, v{vSt}\nv_add_u32 v{vSt}, s{sA}, v{vSt}")
    tr_addr(e, vAW, vL, sHF, L_W, vT0, vT1, vT2, sA)
    e(f"v_lshlrev_b32 v{vT0}, 4, v0\nv_add_u32 v{vT1}, {L_STAGE}, v{vT0}")
    e("s_waitcnt vmcnt(0) lgkmcnt(0)\ns_barrier")
    stamp(e, 2, vStamp, sSt)
    for i in range(3):
        e(f"ds_read_b128 {v(vEA+4*i if i < 2 else vD,4)}, v{vT1} offset:{i*8192}")
    e(f"s_mov_b32 s{sO1}, 8192\ns_mov_b32 s{sO2}, 16384\ns_mov_b32 s{sO3}, 24576")
    for i in range(3):
        e(f"s_waitcnt lgkmcnt({2-i})")
        e(f"buffer_store_dwordx4 {v(vEA+4*i if i < 2 else vD,4)}, v{vT0}, {s(rREC,4)}, {['0', f's{sO1}', f's{sO2}'][i]} offen")
    e(f"s_cmp_lg_u32 s{sW}, 7\ns_cbranch_scc1 K1_NOWB")
    e(f"v_lshl_or_b32 v{vWb}, v{vWb+1}, 16, v{vWb}\nv_lshlrev_b32 v{vWbA}, 2, v{vWbA}\nv_add_u32 v{vWbA}, {WS_WB}, v{vWbA}")
    e(f"global_store_dword v{vWbA}, v{vWb}, {s(sWS,2)}")
    e(f"v_mov_b32 v{vWb+1}, 0\nv_lshlrev_b32 v{vWbA}, 2, v{vL}")
    e("s_cmp_lg_u32 s2, 0\ns_cbranch_scc1 K1_NOWB")
    e(f"global_store_dword v{vWbA}, v{vWb+1}, {s(sWS,2)}")
    e("K1_NOWB:")
    gemm(e, vAcc, vAH, vAW, vHA, vWf, vT2)
    e(f"s_mov_b32 s{sA}, {hex(LOG2E)}\ns_mov_b32 s{sC}, 0x7fff0000\ns_nop 7\ns_nop 3")
    for r in range(13):
        lo, hi = vAcc + r, vAcc + 16 + r
        e(f"v_mul_f32 v{hi}, s{sA}, v{hi}")
        e(f"v_cvt_pk_bf16_f32 v{lo}, v{lo}, v{hi}")
        e(f"v_and_b32 v{hi}, 0x7fffffff, v{hi}\nv_add_u32 v{hi}, 0x8000, v{hi}")
        e(f"v_sub_u32_sdwa v{hi}, v{hi}, v{lo} clamp dst_sel:DWORD dst_unused:UNUSED_PAD src0_sel:DWORD src1_sel:WORD_0")
        e(f"v_bfi_b32 v{lo}, s{sC}, v{hi}, v{lo}")
        e(f"buffer_store_dword v{lo}, v{vSt}, {s(rB,4)}, {['0', f's{sO1}', f's{sO2}', f's{sO3}'][r>>2]} offen offset:{(r&3)*1024}")
    stamp(e, 3, vStamp, sSt)
    if STAMP: e("s_waitcnt vmcnt(0)")
    stamp(e, 4, vStamp, sSt)
    stamp_out(e, vStamp, vT0, vL, sW, sWS, sSt, 0, 5)
    e("K1_END:\ns_endpgm")
    return V.hi, S.hi, lds

def tr_addr(e, vAW, vL, sHF, base, t0, t1, t2, sA):
    e(f"v_bfe_u32 v{t0}, v{vL}, 2, 2")
    e(f"s_lshl_b32 s{sA}, s{sHF}, 1\nv_xor_b32 v{t1}, s{sA}, v{t0}\nv_lshlrev_b32 v{t1}, 6, v{t1}")
    e(f"v_lshl_add_u32 v{t1}, v{t0}, 8, v{t1}")
    e(f"v_lshrrev_b32 v{t0}, 5, v{vL}\nv_lshl_add_u32 v{t1}, v{t0}, 11, v{t1}")
    e(f"v_bfe_u32 v{t0}, v{vL}, 4, 1\nv_lshl_add_u32 v{t1}, v{t0}, 5, v{t1}")
    e(f"v_and_b32 v{t0}, 3, v{vL}\nv_lshl_add_u32 v{t1}, v{t0}, 3, v{t1}")
    e(f"v_xor_b32 v{t2}, 64, v{t1}")
    e(f"v_add_u32 v{vAW}, {base}, v{t1}\nv_add_u32 v{vAW+1}, {base}, v{t2}")

def gemm(e, acc, vAH, vAW, vHA, vWf, t):
    def loads(st):
        p = st & 1
        e(f"v_xor_b32 v{t}, {st<<5}, v{vAH}\nds_read_b128 {v(vHA+4*p,4)}, v{t}")
        for bl in range(2):
            for u in range(2):
                e(f"ds_read_b64_tr_b16 {v(vWf+8*p+4*bl+2*u,2)}, v{vAW+bl} offset:{st*4096+u*1024}")
    loads(0)
    for st in range(8):
        p = st & 1
        if st < 7:
            loads(st + 1)
            e("s_waitcnt lgkmcnt(5)")
        else:
            e("s_waitcnt lgkmcnt(0)")
        for bl in range(2):
            c = "0" if st == 0 else v(acc + 16 * bl, 16)
            e(f"{MFMA} {v(acc+16*bl,16)}, {v(vHA+4*p,4)}, {v(vWf+8*p+4*bl,4)}, {c}")

from gen2_k2 import k2
import lut

def main():
    e = Asm()
    e(".amdgcn_target \"amdgcn-amd-amdhsa--gfx950\"\n.text")
    e(".globl k1_kernel\n.p2align 8\n.type k1_kernel,@function")
    nv1, ns1, lds1 = k1(e)
    e(".globl k2_kernel\n.p2align 8\n.type k2_kernel,@function")
    nv2, ns2, lds2 = k2(e, sys.modules[__name__])
    body = e.text()
    for h in check(body): print(h)
    body += ".p2align 8\n.type silu_table,@object\nsilu_table:\n" + "\n".join(lut.asm_lines()) + "\n.fill 64, 8, 0\n.size silu_table, .-silu_table\n"
    import re
    body = re.sub(r"^(\s+(?:buffer|global)_store_\w+ .*)$", lambda m: m.group(1) + " sc0 sc1", body, flags=re.M)
    tail = ".section .rodata,\"a\"\n.p2align 6\n" + kd("k1_kernel", nv1, ns1) + "\n.p2align 6\n" + kd("k2_kernel", nv2, ns2) + "\n"
    head = HDR + f"; @launch kernel=k1_kernel grid=(256,1,1) block=(512,1,1) lds={lds1}\n; @launch kernel=k2_kernel grid=(256,1,1) block=(512,1,1) lds={lds2}\n"
    out = sys.argv[1] if len(sys.argv) > 1 else "standalone__cheap_equivariant_egnn__graph.s"
    open(out, "w").write(head + body + tail)
    print("k1 v%d s%d lds%d | k2 v%d s%d lds%d" % (nv1, ns1, lds1, nv2, ns2, lds2))

if __name__ == "__main__":
    main()
```

```python
from asmlib import *
MFMA = "v_mfma_f32_32x32x16_bf16"
MF4 = "v_mfma_f32_4x4x4_16b_bf16"

class Q:
    def __init__(self, e, cnt="lgkmcnt", cap=15):
        self.e, self.q, self.done, self.cnt, self.cap = e, [], 0, cnt, cap
    def issue(self, name, text):
        self.e(text); self.q.append(name)
        assert len(self.q) - self.done <= self.cap, self.q
    def count(self, name):
        k = max(i for i, n in enumerate(self.q) if n == name) + 1
        if k <= self.done: return None
        self.done = k
        return len(self.q) - k
    def wait(self, name):
        n = self.count(name)
        if n is not None: self.e(f"s_waitcnt {self.cnt}({n})")

def tile_body(e, R, Sx, nq):
    raw = R.RAW + 16 * Sx
    DL, DH, T, X, F, M, NID, t = R.DL, R.DH, R.T, R.X, R.F, R.M, R.NID, R.t
    q = Q(e)
    qs = range(nq)
    def tr(k): q.issue("X", f"ds_read_b64_tr_b16 {v(X+2*k,2)}, v{NID+k} offset:{8+256*(k>>1)+32*(k&1)}")
    def C(st):
        if 2 * st < nq:
            for m in range(4): e(f"v_cvt_pk_bf16_f32 v{M+4*st+m}, v{DH+8*st+m}, v{DH+8*st+4+m}")
    def LA(k):
        if k < nq:
            for r in range(DL + 4 * k, DL + 4 * k + 4):
                e(f"v_lshlrev_b32_sdwa v{r}, 1, v{r} dst_sel:DWORD dst_unused:UNUSED_PAD src0_sel:DWORD src1_sel:WORD_1")
    def LR(k):
        if k < nq:
            for r in range(DL + 4 * k, DL + 4 * k + 4):
                q.issue(f"L{k}", f"ds_read_u16{'_d16_hi' if k&1 else ''} v{r}, v{r} offset:{R.L_LUT}")
    def S2l(k):
        if k < nq:
            q.wait(f"L{k}")
            e(f"{MFMA} {v(T,16)}, {v(DL+4*k,4)}, {v(X+4*(k>>1),4)}, {v(T,16)}")
    def S2h(st):
        if 2 * st < nq: e(f"{MFMA} {v(T+16,16)}, {v(M+4*st,4)}, {v(X+4*st,4)}, {v(T+16,16)}")
    def G(k): R.row_loads(Sx, 4 * k, 4 * k + 4)
    def MH(): e(f"{MFMA} {v(DH,16)}, {v(F,4)}, {v(R.P+4,4)}, {v(raw,16)}")
    nx = 4 if nq > 2 else 2

    e(f"v_readlane_b32 s{R.sD}, v{R.vDesc}, s{R.sI}")
    for k in range(nx): e(f"v_lshl_add_u32 v{NID+k}, v{NID+k}, 16, v{R.aX}")
    e("s_waitcnt vmcnt(16)")
    if R.UNP == "q":
        for k in range(max(nq, nx)):
            if k < nq: e(f"{MF4} {v(DL+4*k,4)}, {v(R.SEL,2)}, {v(raw+4*k,2)}, 0")
            if k < nx: tr(k)
        for k in qs:
            e(f"{MF4} {v(DL+4*k,4)}, {v(R.SEL+2,2)}, {v(raw+4*k+2,2)}, {v(DL+4*k,4)}")
        MH()
        e(f"s_lshr_b32 s{R.sB2}, s{R.sD}, 16\nv_add_u32 v{R.aI}, s{R.sB2}, v{R.cI}\ns_nop 0")
        e(f"{MFMA} {v(DL,16)}, {v(F,4)}, {v(R.P,4)}, {v(DL,16)}")
        e("s_nop 2")
    else:
        MH()
        for k in range(nx): tr(k)
        if R.UNP == "sh":
            for k in range(2 * nq): e(f"v_lshlrev_b64 {v(DL+2*k,2)}, 16, {v(raw+2*k,2)}")
        else:
            for k in range(4 * nq): e(f"v_lshlrev_b32 v{DL+k}, 16, v{raw+k}")
        e(f"s_lshr_b32 s{R.sB2}, s{R.sD}, 16\nv_add_u32 v{R.aI}, s{R.sB2}, v{R.cI}")
        e(f"{MFMA} {v(DL,16)}, {v(F,4)}, {v(R.P,4)}, {v(DL,16)}")
    for k in range(4):
        q.issue("IDX", f"ds_read_b128 {v(raw+4*k,4)}, v{R.aI} offset:{32*k}")
    e(f"s_and_b32 s{R.sB1}, s{R.sD}, 0xff00")
    e(f"v_add_u32 v{R.aE}, s{R.sB1}, v{R.cE}\nv_add_u32 v{R.aN}, s{R.sB1}, v{R.cX}\nv_add_u32 v{R.aX}, s{R.sB1}, v{R.cX2}")
    e(f"s_add_u32 s{R.sI}, s{R.sI}, 1")
    q.issue("Wt", f"ds_read_b32 v{R.vWt}, v{R.aE}")
    q.issue("NID", f"ds_read_b128 {v(NID,4)}, v{R.aN}")
    e("s_nop 0")
    LA(0); LA(1); q.wait("IDX"); LR(0); G(0); LR(1); G(1)
    q.wait("NID")
    LA(2); LA(3)
    e(f"v_perm_b32 v{R.aE}, v{R.vWt}, v{R.aE}, v{R.cM}\ns_nop 0")
    G(2); LR(2); G(3)
    if nq > 3: q.wait("L0")
    LR(3)
    q.issue("F", f"ds_read_b128 {v(F,4)}, v{R.aE}")
    e("s_setprio 0")
    n = 4 * nq
    for r in range(n): e(f"v_exp_f32 v{t+r}, -v{DH+r}")
    for r in range(n): e(f"v_add_f32 v{t+r}, 1.0, v{t+r}")
    for r in range(n): e(f"v_rcp_f32 v{t+r}, v{t+r}")
    for r in range(0, n, 2): e(f"v_pk_mul_f32 {v(DH+r,2)}, {v(DH+r,2)}, {v(t+r,2)}")
    e("s_setprio 1")
    S2l(0); C(0); S2l(1); C(1); S2l(2)
    q.wait("F")
    e(f"v_bfi_b32 v{F+3}, s{R.sHiM}, v{R.vWt}, v{F+3}")
    S2l(3); S2h(0); S2h(1)
    assert q.done == len(q.q), (nq, q.q, q.done)

def gswitch(e, R, g):
    src = R.Q if g in (0, 2) else R.R
    if g < 2:
        e("s_mov_b32 exec_hi, 0")
        for r in range(0, 8, 2): e(f"v_mov_b64 {v(R.P+r,2)}, {v(src+r,2)}")
        e("s_mov_b32 exec_hi, -1")
    else:
        for r in range(8): e(f"v_permlane32_swap_b32 v{src+r}, v{R.P+r}")

def grestore(e, R):
    for src in (R.R, R.Q):
        for r in range(8): e(f"v_permlane32_swap_b32 v{src+r}, v{R.P+r}")
        e("s_nop 1")

def main_loop(e, R):
    T, DL, DH, t, M = R.T, R.DL, R.DH, R.t, R.M
    for Sx in range(2):
        e(f"M_FULL{Sx}:")
        tile_body(e, R, Sx, 4)
        e(f"s_bitcmp1_b32 s{R.sD}, 4")
        e("s_cbranch_scc0 M_DISP" if Sx == 0 else "s_cbranch_scc1 M_FULL0")
    e("M_DISP:")
    e(f"s_bitcmp0_b32 s{R.sD}, 3\ns_cbranch_scc1 M_SEL")
    e("M_FLUSH:")
    for k in range(4): e(f"ds_read_b128 {v(DH+4*k,4)}, v{R.cW} offset:{R.L_WX+32*k}")
    e(f"s_lshl_b32 s{R.sA}, s{R.sGQ}, 2\ns_mul_i32 s{R.sB_}, s{R.sGQ}, 48")
    e(f"v_xor_b32 v{M}, s{R.sA}, v{R.cC}\nv_add3_u32 v{M}, v{M}, s{R.sB_}, v{R.cP}")
    e(f"s_add_u32 s{R.sGQ}, s{R.sGQ}, 1\ns_nop 1")
    for k in range(16):
        e(f"v_cvt_pk_bf16_f32 v{t+k}, v{T+2*k}, v{T+2*k+1}")
        if k == 5: e("s_waitcnt lgkmcnt(0)")
        if k in (5, 9, 13):
            j = (k - 5) // 4
            e(f"{MFMA} {v(DL,16)}, {v(DH+4*j,4)}, {v(t+4*j,4)}, {'0' if j == 0 else v(DL,16)}")
    e(f"s_mov_b64 exec, {s(R.sGM,2)}")
    e(f"v_mov_b64 {v(R.MC,2)}, {v(t,2)}")
    e(f"{MFMA} {v(DL,16)}, {v(DH+12,4)}, {v(t+12,4)}, {v(DL,16)}")
    for k in range(2, 16, 2): e(f"v_mov_b64 {v(R.MC+k,2)}, {v(t+k,2)}")
    e(f"s_andn2_b32 exec_lo, s{R.sPM}, s{R.sGM}\ns_mov_b32 exec_hi, 0")
    e(f"{MFMA} {v(T,16)}, {v(R.ZR,4)}, {v(R.ZR,4)}, 0")
    e(f"s_lshl_b64 {s(R.sGM,2)}, {s(R.sGM,2)}, 1\ns_mov_b32 s{R.sPM}, 0xffffff")
    e(f"v_mul_f32 v{M+1}, {hex(R.LN2)}, v{DL}")
    e(f"{MFMA} {v(T+16,16)}, {v(R.ZR,4)}, {v(R.ZR,4)}, 0")
    e(f"ds_add_f32 v{M}, v{M+1} offset:{R.L_PACC-4}")
    e(f"s_mov_b64 exec, -1")
    e(f"s_cmp_eq_u32 s{R.sGQ}, 4\ns_cbranch_scc1 M_END")
    e(f"s_cmp_eq_u32 s{R.sGQ}, 2\ns_cbranch_scc1 M_G2\ns_cmp_eq_u32 s{R.sGQ}, 3\ns_cbranch_scc1 M_G3")
    for g in (1, 2, 3):
        if g > 1: e(f"M_G{g}:")
        gswitch(e, R, g)
        if g < 3: e("s_branch M_SEL")
    e("M_SEL:")
    e(f"s_and_b32 s{R.sA}, s{R.sD}, 7\ns_bitcmp1_b32 s{R.sI}, 0\ns_cbranch_scc1 M_SEL1")
    for Sx in range(2):
        if Sx: e("M_SEL1:")
        e(f"s_cmp_eq_u32 s{R.sA}, 4\ns_cbranch_scc1 M_FULL{Sx}")
        e(f"s_cmp_eq_u32 s{R.sA}, 2\ns_cbranch_scc1 M_P2_{Sx}\ns_cmp_eq_u32 s{R.sA}, 1\ns_cbranch_scc1 M_P1_{Sx}")
        for nq in (3, 2, 1):
            if nq < 3: e(f"M_P{nq}_{Sx}:")
            tile_body(e, R, Sx, nq)
            e("s_branch M_FLUSH")
    e("M_END:\ns_setprio 0")
```

```python
import sys, os, types, re
from asmlib import *
import ml3, lut
from ml3 import Q, MFMA

env = lambda k, d: os.environ.get(k, d)
SAFE, STAMP, UNP = int(env("SAFE", "0")), int(env("STAMP", "0")), env("UNP", "sh")
EXP, GPOL = int(env("EXP", "0")), env("GPOL", "")
PF = int(env("PF", "1"))
KN = "standalone__cheap_equivariant_egnn__graph_kernel"
N, E, NPW, CH = 25000, 400000, 98, 1568
WS_B, WS_REC, WS_MA, WS_FB, WS_NONCE, WS_WB = 256, 0x680000, 0xB80000, 0xC00000, 0xC08000, 0xC10000
LOG2E, LN2 = 0x3fb8aa3b, 0x3f317218
SPIN = 400000
WT = "sc0 sc1"
HDR = open("standalone__cheap_equivariant_egnn__graph.s.ref").read().split("; Override launch")[0]
P_H, P_POS, P_EA, P_SRC, P_DST, P_WE, P_WX, P_WH = 4, 6, 8, 10, 12, 14, 16, 18

def srd(e, d, base, nrec, off=None, w3="0x20000", stride=0):
    if off is None:
        e(f"s_mov_b32 s{d}, s{base}\ns_and_b32 s{d+1}, s{base+1}, 0xffff")
    else:
        e(f"s_add_u32 s{d}, s{base}, {off}\ns_addc_u32 s{d+1}, s{base+1}, 0\ns_and_b32 s{d+1}, s{d+1}, 0xffff")
    if stride: e(f"s_or_b32 s{d+1}, s{d+1}, {hex(stride << 16)}")
    e(f"s_mov_b32 s{d+2}, {nrec}\ns_mov_b32 s{d+3}, {w3}")

def scan_dpp(e, op, r, full=True):
    for sh in (1, 2, 4, 8):
        e(f"s_nop 1\n{op}_dpp v{r}, v{r}, v{r} row_shr:{sh} row_mask:0xf bank_mask:0xf bound_ctrl:1")
    e(f"s_nop 1\n{op}_dpp v{r}, v{r}, v{r} row_bcast:15 row_mask:0xa bank_mask:0xf")
    if full: e(f"s_nop 1\n{op}_dpp v{r}, v{r}, v{r} row_bcast:31 row_mask:0xc bank_mask:0xf")

def kernel(e):
    L_OH, L_CNT, L_FLAG, L_WX, L_PACC, L_TILES = 0, 128, 192, 256, 512, 2560
    TB, CAP, SLICE = 768, 160, 7680
    L_H, L_STAGE, L_HIST, L_BASE = 2560, 28160, 53248, 54272
    L_LUT = L_WS = 64000
    L_WD, L_WT = L_WS + 32768, L_WS + 65536
    S = Regs("s", 20, 102); V = Regs("v", 1, 256)
    sOUT = S.alloc("out", 2, 4); sWS = S.alloc("ws", 2)
    rH, rO, rB, rREC, rPOS, rX = (S.alloc(n, 4) for n in ("h", "o", "b", "rec", "pos", "x"))
    (sW, sT, sHF, sA, sB_, sC, sK, sBeta, sTot, sRound, sI, sGQ, sD, sB0, sB1, sB2, sO1, sO2, sO3, sPend, sMore,
     sHiM, sScr, sPM, sNon, sNon2) = (S.alloc(n) for n in "w t hf a b c k beta tot round i gq d b0 b1 b2 o1 o2 o3 pend more him scr pm non non2".split())
    sM = S.alloc("m", 8, 2); sDn = S.alloc("dn", 8, 2); sGM = S.alloc("gm", 2); sT2 = S.alloc("t2", 2); sLut = S.alloc("lut", 2)
    sSt = S.alloc("st", 2)
    sCn, sCu = 8, 12
    sVal = sGM
    (vL, vWt, aX, aN, aE, aI, cX, cX2, cE, cI, cM, vDesc, vSt, cW, cC, cP, vPo, vStamp, vFour) = (V.alloc(n) for n in
        "l wt ax an ae ai cx cx2 ce ci cm desc st cw cc cp po stamp four".split())
    vOFF = V.alloc("off", 2); vPa = V.alloc("pa", 2); vLa = V.alloc("la", 2)
    T = V.alloc("T", 32); Z = V.alloc("Z", 32); Qr = V.alloc("Q", 8); Rr = V.alloc("R", 8); P = V.alloc("P", 8)
    MC = V.alloc("MC", 16); MX = V.alloc("MX", 8); RAW = V.alloc("RAW", 32); DL = V.alloc("DL", 16); DH = V.alloc("DH", 16)
    M = V.alloc("M", 8); F = V.alloc("F", 4); X = V.alloc("X", 8); NID = V.alloc("NID", 4); t = V.alloc("t", 16)
    ZR = V.alloc("zr", 4); SEL = V.alloc("sel", 4)
    u = t + 8
    so = ['0', f's{sO1}', f's{sO2}', f's{sO3}']
    names = []
    def st(name):
        i = len(names); names.append(str(name))
        if STAMP: e(f"{'s_memtime' if STAMP == 2 else 's_memrealtime'} {s(sSt,2)}\ns_waitcnt lgkmcnt(0)\nv_writelane_b32 v{vStamp}, s{sSt}, {i}")
    def row_loads(Sx, lo=0, hi=16):
        for r in range(RAW + 16 * Sx + lo, RAW + 16 * Sx + hi):
            if SAFE: e(f"v_and_b32 v{r}, 0x7fffff, v{r}")
            if EXP & 1: e("s_nop 0")
            else: e(f"buffer_load_dword v{r}, v{r}, {s(rB,4)}, 0 offen {GPOL}")
    Rn = types.SimpleNamespace(**locals()); Rn.Q, Rn.R, Rn.UNP, Rn.LN2 = Qr, Rr, UNP, LN2
    vm = Q(e, "vmcnt", 63)

    vD, vS, vEA, vQ, vR, vC, vP = Z, Z + 4, Z + 8, Z + 16, Z + 20, Z + 24, Z + 28
    WTR, W5, vWx, vWb = F, Rr, P, P + 2
    e(f"{KN}:")
    e("s_cmp_ge_u32 s2, 256\ns_cbranch_scc1 K_END")
    st('start')
    e(f"s_load_dwordx16 s[4:19], s[0:1], 0\ns_load_dwordx2 {s(sOUT,2)}, s[0:1], 64\ns_load_dwordx2 {s(sWS,2)}, s[0:1], 80")
    e(f"s_lshr_b32 s3, s2, 3\ns_and_b32 s2, s2, 7\ns_lshl_b32 s2, s2, 5\ns_or_b32 s2, s2, s3")
    e(f"v_lshrrev_b32 v{t}, 6, v0\nv_and_b32 v{vL}, 63, v0\ns_mul_i32 s{sB_}, s2, 392")
    e(f"v_readfirstlane_b32 s{sW}, v{t}\nv_mad_u32_u24 v{t+1}, v{t}, 49, v{vL}\nv_add_u32 v{t+1}, s{sB_}, v{t+1}")
    e(f"s_mov_b32 s{sC}, {E//4}\nv_min_u32 v{t+2}, {E//4-1}, v{t+1}\nv_lshlrev_b32 v{t+3}, 5, v{t+2}\nv_lshlrev_b32 v{t+2}, 4, v{t+2}")
    e(f"s_mul_i32 s{sK}, s2, {NPW}\ns_sub_u32 s{sA}, {N}, s{sK}\ns_min_u32 s{sA}, s{sA}, {NPW}\ns_lshl_b32 s{sTot}, s{sA}, 8\ns_lshl_b32 s{sK}, s{sK}, 8")
    e(f"v_lshrrev_b32 v{u}, 4, v{vL}\nv_and_b32 v{u+1}, 15, v{vL}")
    e(f"v_xor_b32 v{u+2}, s{sW}, v{u+1}\nv_lshlrev_b32 v{u+2}, 4, v{u+2}\nv_lshl_or_b32 v{u+2}, v{u}, 8, v{u+2}\nv_xor_b32 v{u+3}, 128, v{u+2}")
    e(f"v_lshlrev_b32 v{u+4}, 2, v{u}\nv_xor_b32 v{u+4}, v{u+4}, v{u+1}\nv_lshlrev_b32 v{u+4}, 4, v{u+4}\nv_lshl_or_b32 v{u+4}, v{u}, 8, v{u+4}")
    e("s_mov_b32 exec_hi, 0x1ffff")
    e(f"v_cmp_gt_u32 {s(sVal,2)}, s{sC}, v{t+1}")
    e("s_waitcnt lgkmcnt(0)")
    st('karg')
    vm.issue("dst", f"global_load_dwordx4 {v(vD,4)}, v{t+2}, {s(P_DST,2)}")
    vm.issue("src", f"global_load_dwordx4 {v(vS,4)}, v{t+2}, {s(P_SRC,2)}")
    vm.issue("ea", f"global_load_dwordx4 {v(vEA,4)}, v{t+3}, {s(P_EA,2)}")
    vm.issue("ea", f"global_load_dwordx4 {v(vEA+4,4)}, v{t+3}, {s(P_EA,2)} offset:16")
    e("s_mov_b32 exec_hi, -1")
    srd(e, rH, P_H, f"s{sTot}", off=f"s{sK}")
    e(f"s_lshl_b32 s{sScr}, s{sW}, 10\ns_cmp_lg_u32 s{sW}, 0\ns_cbranch_scc1 K_NOH3")
    e(f"s_movk_i32 s{sA}, 24576\ns_mov_b32 m0, {L_H+24576}\ns_nop 0\nbuffer_load_dwordx4 v{u+3}, {s(rH,4)}, s{sA} offen lds")
    e("K_NOH3:")
    for i in range(3):
        e(f"s_add_u32 s{sA}, s{sScr}, {i*8192}\ns_add_u32 m0, s{sA}, {L_H}\ns_nop 0")
        vm.issue("h", f"buffer_load_dwordx4 v{u+3 if i&1 else u+2}, {s(rH,4)}, s{sA} offen lds")
    e(f"s_lshr_b32 s{sT}, s{sW}, 1\ns_and_b32 s{sHF}, s{sW}, 1")
    e(f"s_mov_b32 s{sO1}, 8192\ns_mov_b32 s{sO2}, 16384\ns_mov_b32 s{sO3}, 24576\ns_mov_b32 s{sHiM}, 0xffff0000")
    e(f"v_mov_b32 v{P+1}, {WS_NONCE}")
    vm.issue("non", f"global_load_dword v{P+1}, v{P+1}, {s(sWS,2)} sc1")
    e(f"s_getpc_b64 {s(sLut,2)}\nK_PC:\ns_add_u32 s{sLut}, s{sLut}, silu_table-K_PC\ns_addc_u32 s{sLut+1}, s{sLut+1}, 0")
    srd(e, rX, P_WE, 261 * 256)
    srd(e, rPOS, P_POS, N * 6)
    if PF:
        e(f"s_cmp_gt_u32 s{sW}, 3\ns_cbranch_scc1 K_NOPF\ns_lshl_b32 s{sA}, s3, 7\nv_lshl_add_u32 v{t+4}, v{vL}, 12, s{sA}\nv_mov_b32 v{t+5}, 0")
        e(f"s_cmp_eq_u32 s{sW}, 1\ns_cbranch_scc1 K_PF1\ns_cmp_eq_u32 s{sW}, 2\ns_cbranch_scc1 K_PF2\ns_cmp_eq_u32 s{sW}, 3\ns_cbranch_scc1 K_PF3")
        e(f"buffer_load_dword v{aI}, v{t+4}, {s(rX,4)}, 0 offen\ns_branch K_NOPF")
        e(f"K_PF1:\nbuffer_load_dword v{aI}, v{t+4}, {s(rPOS,4)}, 0 offen\ns_branch K_NOPF")
        e(f"K_PF2:\ns_mov_b64 exec, 0xffff\nglobal_load_dword v{aI}, v{t+4}, {s(P_WH,2)}\ns_mov_b64 exec, -1\ns_branch K_NOPF")
        e(f"K_PF3:\ns_sub_u32 s{sT2}, s{sLut}, silu_table-{KN}\ns_subb_u32 s{sT2+1}, s{sLut+1}, 0\nv_min_u32 v{t+4}, silu_table-{KN}+99836, v{t+4}")
        e(f"v_lshl_add_u64 {v(t+4,2)}, {v(t+4,2)}, 0, {s(sT2,2)}\ns_mov_b32 exec_hi, 0\nglobal_load_dword v{aI}, {v(t+4,2)}, off\ns_mov_b32 exec_hi, -1")
        e("K_NOPF:")
    st('issued')
    for i in range(4): e(f"v_mov_b32 v{ZR+i}, 0")
    e(f"v_lshlrev_b32 v{t+2}, 2, v0\nv_and_b32 v{t+2}, 0x3ff, v{t+2}\nds_write_b32 v{t+2}, v{ZR} offset:{L_HIST}")
    srd(e, rO, sOUT, f"s{sTot}", off=f"s{sK}")
    e(f"s_add_u32 s{sK}, s{sK}, {WS_B}")
    srd(e, rB, sWS, f"s{sTot}", off=f"s{sK}")
    e(f"s_mul_i32 s{sA}, s2, {CH*12}\ns_add_u32 s{sA}, s{sA}, {WS_REC}")
    srd(e, rREC, sWS, CH * 12, off=f"s{sA}")
    e(f"v_lshlrev_b32 v{t+4}, 4, v0")
    e(f"v_mov_b32 v{t+5}, 0\nv_lshl_add_u64 {v(vLa,2)}, {v(t+4,2)}, 0, {s(sLut,2)}\ns_mov_b32 s{sLut}, 8192\ns_mov_b32 s{sLut+1}, 0")
    hh, j, c3 = t, t + 1, t + 3
    e(f"v_lshrrev_b32 v{hh}, 5, v{vL}\nv_and_b32 v{j}, 31, v{vL}\nv_and_b32 v{c3}, 3, v{vL}\nv_mov_b32 v{vFour}, 4")
    e(f"v_lshlrev_b32 v{cI}, 4, v{hh}\nv_add_u32 v{cI}, 512, v{cI}")
    e(f"v_bfe_u32 v{t+2}, v{vL}, 2, 1\nv_lshl_add_u32 v{t+2}, v{t+2}, 1, v{hh}\nv_bfe_u32 v{t+4}, v{vL}, 3, 1\nv_lshlrev_b32 v{t+4}, 4, v{t+4}")
    e(f"v_lshl_add_u32 v{cX}, v{t+2}, 5, v{t+4}\nv_add_u32 v{cX}, 640, v{cX}\nv_lshl_add_u32 v{cX2}, v{t+2}, 6, v{t+4}")
    e(f"v_bfe_u32 v{t+2}, v{vL}, 4, 1\nv_lshl_add_u32 v{t+2}, v{t+2}, 2, v{c3}\nv_add_u32 v{t+2}, 1, v{t+2}\nv_lshlrev_b32 v{t+2}, 20, v{t+2}\nv_sub_u32 v{cX2}, v{cX2}, v{t+2}")
    e(f"v_lshlrev_b32 v{cE}, 4, v{j}\nv_add_u32 v{cE}, 0x100000, v{cE}\nv_mov_b32 v{cM}, 0x0c0c0100")
    e("s_mov_b32 exec_hi, 0")
    e(f"v_mov_b32 v{cM}, 0x0c0c0504\nv_and_b32 v{cE}, 12, v{j}\nv_lshlrev_b32 v{cE}, 3, v{cE}\nv_and_b32 v{t+2}, 1, v{j}\nv_lshl_add_u32 v{cE}, v{t+2}, 4, v{cE}")
    e(f"v_lshrrev_b32 v{t+2}, 4, v{j}\nv_lshl_add_u32 v{cE}, v{t+2}, 3, v{cE}\nv_and_b32 v{t+2}, 2, v{j}\nv_lshl_add_u32 v{cE}, v{t+2}, 1, v{cE}\nv_add_u32 v{cE}, 640, v{cE}")
    e("s_mov_b32 exec_hi, -1")
    e(f"s_lshl_b32 s{sB_}, s{sHF}, 7\nv_lshl_add_u32 v{cW}, v{hh}, 4, s{sB_}\nv_lshlrev_b32 v{cC}, 2, v{c3}")
    e(f"s_mul_i32 s{sA}, s{sT}, 12\nv_bfe_u32 v{cP}, v{vL}, 2, 3\nv_mul_u32_u24 v{cP}, 192, v{cP}\nv_add_u32 v{cP}, s{sA}, v{cP}")
    e(f"s_lshl_b32 s{sA}, s{sT}, 8\ns_add_u32 s{sA}, s{sA}, s{sB_}")
    e(f"v_lshlrev_b32 v{vSt}, 2, v{j}\nv_lshl_add_u32 v{vSt}, v{hh}, 12, v{vSt}\nv_add_u32 v{vSt}, s{sA}, v{vSt}")
    e(f"v_mov_b32 v{t+4}, 0x3f80")
    for m in range(4):
        e(f"v_cmp_eq_u32 {s(sT2,2)}, {m}, v{c3}\ns_nop 1\nv_cndmask_b32 v{SEL+m}, 0, v{t+4}, {s(sT2,2)}")
    e(f"v_lshrrev_b32 v{t+5}, 3, v{vL}\nv_and_b32 v{t+6}, 7, v{vL}\nv_add_u32 v{t+6}, 1, v{t+6}\nv_cmp_eq_u32 {s(sT2,2)}, v{t+5}, v{t+6}")
    e(f"v_lshlrev_b32 v{t+2}, 1, v{vL}\ns_nop 0\nv_cndmask_b32 v{t+5}, 0, v{t+4}, {s(sT2,2)}\nds_write_b16 v{t+2}, v{t+5} offset:{L_OH}")
    e(f"v_mov_b32 v{vPa}, 0\nv_mov_b32 v{vPa+1}, 0\nv_mov_b32 v{vOFF}, 0")
    e(f"s_mov_b32 s{sBeta}, 0\ns_mov_b32 s{sRound}, 0")
    for i in range(4): e(f"s_mov_b64 {s(sDn+2*i,2)}, 0")
    aW5, aPo, aWb, aWo, a = aX, aN, aE, M + 6, P + 4
    e(f"v_mov_b32 v{aWo}, v{u+4}")
    e(f"s_lshl_b32 s{sA}, s{sHF}, 7\ns_add_u32 s{sA}, s{sA}, {256*256}\nv_lshl_add_u32 v{aW5}, v{j}, 1, s{sA}")
    e(f"s_mul_i32 s{sA}, s2, 588\nv_min_u32 v{aPo}, 146, v0\nv_lshl_add_u32 v{aPo}, v{aPo}, 2, s{sA}")
    e(f"s_lshl_b32 s{sA}, s2, 5\nv_add_u32 v{a}, s{sA}, v{j}")
    e(f"v_bfe_u32 v{aWb}, v{a}, 8, 3\nv_lshlrev_b32 v{aWb}, 4, v{aWb}")
    for lo, w, sh in ((0, 1, 1), (1, 1, 3), (7, 1, 2)):
        e(f"v_bfe_u32 v{t+5}, v{a}, {lo}, {w}\nv_lshl_add_u32 v{aWb}, v{t+5}, {sh}, v{aWb}")
    e(f"v_lshlrev_b32 v{aWb}, 8, v{aWb}")
    for lo, w, sh in ((2, 5, 2), (11, 1, 1), (12, 1, 7)):
        e(f"v_bfe_u32 v{t+5}, v{a}, {lo}, {w}\nv_lshl_add_u32 v{aWb}, v{t+5}, {sh}, v{aWb}")
    e(f"v_add_u32 v{aWb}, {128*256}, v{aWb}\nv_lshlrev_b32 v{vWx}, 2, v{vL}")
    def w_dma(i):
        e(f"s_add_u32 s{sD}, s{sScr}, {(i^4)*8192}\ns_add_u32 m0, s{sScr}, {L_WS+i*8192}\ns_nop 0")
        vm.issue("ws" if i < 4 else "wd", f"buffer_load_dwordx4 v{aWo}, {s(rX,4)}, s{sD} offen lds")
    aH1, aH2, aWs, aWt = M, M + 1, M + 2, M + 4
    def h_addr(dst, l):
        e(f"v_add_u32 v{l}, s{sT}, v{l}\nv_min_u32 v{l}, 99, v{l}")
        e(f"v_bfe_u32 v{t+5}, v{l}, 2, 4\nv_xor_b32 v{t+5}, v{t+5}, v{hh}\nv_lshlrev_b32 v{t+5}, 4, v{t+5}\nv_lshl_add_u32 v{dst}, v{l}, 8, v{t+5}")
    e(f"v_lshlrev_b32 v{t+2}, 2, v{j}")
    h_addr(aH1, t + 2)
    e(f"v_lshlrev_b32 v{t+2}, 4, v{c3}")
    for lo, sh in ((3, 6), (2, 3), (4, 2)):
        e(f"v_bfe_u32 v{t+5}, v{vL}, {lo}, 1\nv_lshl_add_u32 v{t+2}, v{t+5}, {sh}, v{t+2}")
    h_addr(aH2, t + 2)
    r2, jh, row = t + 2, t + 4, t + 5
    e(f"v_bfe_u32 v{r2}, v{vL}, 2, 2\nv_bfe_u32 v{jh}, v{vL}, 4, 1\nv_lshlrev_b32 v{row}, 8, v{r2}\nv_lshl_add_u32 v{row}, v{hh}, 11, v{row}")
    e(f"s_lshl_b32 s{sA}, s{sHF}, 1\nv_xor_b32 v{t+6}, s{sA}, v{r2}\nv_lshl_add_u32 v{t+6}, v{t+6}, 6, v{row}")
    e(f"v_lshl_add_u32 v{t+6}, v{jh}, 5, v{t+6}\nv_lshl_add_u32 v{t+6}, v{c3}, 3, v{t+6}\nv_xor_b32 v{t+7}, 64, v{t+6}")
    e(f"v_add_u32 v{aWs}, {L_WS}, v{t+6}\nv_add_u32 v{aWs+1}, {L_WS}, v{t+7}")
    e(f"v_and_b32 v{t+6}, 1, v{r2}\nv_xor_b32 v{t+6}, s{sHF}, v{t+6}\nv_lshl_add_u32 v{t+6}, v{t+6}, 7, v{row}")
    e(f"v_lshl_add_u32 v{t+6}, v{jh}, 6, v{t+6}\nv_lshl_add_u32 v{t+6}, v{c3}, 4, v{t+6}\nv_lshrrev_b32 v{t+7}, 1, v{r2}\nv_lshl_add_u32 v{t+6}, v{t+7}, 3, v{t+6}")
    e(f"v_xor_b32 v{t+7}, 8, v{t+6}\nv_add_u32 v{aWt}, {L_WT}, v{t+6}\nv_add_u32 v{aWt+1}, {L_WT}, v{t+7}")
    e(f"v_mov_b32 v{t}, 0x1000c\nv_lshlrev_b32 v{t+1}, 4, v{vL}\nv_lshlrev_b32 v{t+2}, 4, v0")
    e(f"s_mov_b32 s{sC}, 42800\ns_movk_i32 s{sA}, {-NPW}\ns_movk_i32 s{sB_}, 128")
    st('consts')
    e("s_waitcnt lgkmcnt(0)\ns_barrier")

    for i in range(4): w_dma(i)
    vm.wait("dst")
    st('dst')
    for i in range(4):
        e(f"v_mul_u32_u24 v{vQ+i}, s{sC}, v{vD+i}\nv_lshrrev_b32 v{vQ+i}, 22, v{vQ+i}")
        e(f"v_mad_i32_i24 v{vD+i}, v{vQ+i}, s{sA}, v{vD+i}\nv_lshlrev_b32 v{vQ+i}, 2, v{vQ+i}")
    e(f"s_mov_b64 exec, {s(sVal,2)}")
    for i in range(4): e(f"ds_add_rtn_u32 v{vR+i}, v{vQ+i}, v{t} offset:{L_HIST}")
    e("s_mov_b64 exec, -1")
    vm.wait("src")
    for i in range(4):
        e(f"v_lshl_or_b32 v{vS+i}, v{vS+i}, 8, v{vD+i}\nv_or_b32 v{vS+i}, s{sB_}, v{vS+i}")
    e("s_waitcnt lgkmcnt(0)\ns_barrier")
    e(f"ds_read_b128 {v(vC,4)}, v{t+1} offset:{L_HIST}\ns_waitcnt lgkmcnt(0)")
    e(f"v_add_u32 v{t+3}, v{vC}, v{vC+1}\nv_add3_u32 v{t+3}, v{t+3}, v{vC+2}, v{vC+3}\nv_mov_b32 v{t+4}, v{t+3}\nv_subrev_u32 v{t+3}, {L_STAGE}, v{t+3}")
    scan_dpp(e, "v_add_u32", t + 4)
    e(f"v_sub_u32 v{vP}, v{t+4}, v{t+3}")
    for i in range(3): e(f"v_add_u32 v{vP+i+1}, v{vP+i}, v{vC+i}")
    e(f"ds_write_b128 v{t+1}, {v(vP,4)} offset:{L_BASE}")
    for i in range(4): e(f"ds_read_b32 v{vD+i}, v{vQ+i} offset:{L_BASE}")
    vm.wait("ea")
    e(f"s_mov_b64 exec, {s(sVal,2)}")
    for i in range(4):
        e(f"s_waitcnt lgkmcnt({3+i})")
        e(f"v_add_u32_sdwa v{vR+i}, v{vR+i}, v{vD+i} dst_sel:DWORD dst_unused:UNUSED_PAD src0_sel:WORD_0 src1_sel:WORD_0")
        e(f"ds_write2_b32 v{vR+i}, v{vEA+2*i}, v{vEA+2*i+1} offset0:0 offset1:1")
        e(f"ds_write_b32 v{vR+i}, v{vS+i} offset:8")
    e("s_mov_b64 exec, -1")
    e(f"s_waitcnt vmcnt({vm.count('ws')}) lgkmcnt(0)\ns_barrier")
    st('b3')
    for i in range(3): e(f"ds_read_b128 {v(t+4+4*i,4)}, v{t+2} offset:{L_STAGE+i*8192}")
    HA1, HA2, WF = RAW, DL, MC
    def h_frag(q, dst, a_, k):
        e(f"v_xor_b32 v{t+3}, {k<<5}, v{a_}")
        q.issue(f"h{dst}_{k}", f"ds_read_b128 {v(dst+4*k,4)}, v{t+3} offset:{L_H}")
    for i in range(3):
        e(f"s_waitcnt lgkmcnt({2-i})")
        vm.issue("rec", f"buffer_store_dwordx4 {v(t+4+4*i,4)}, v{t+2}, {s(rREC,4)}, {so[i]} offen {WT}")
    def gemm(acc, HA, aW, woff, aH=None, fill=None):
        q = Q(e)
        def loads(k):
            if aH is not None: h_frag(q, HA, aH, k)
            for bl in range(2):
                for uu in range(2):
                    q.issue(f"w{k}", f"ds_read_b64_tr_b16 {v(WF+8*(k%3)+4*bl+2*uu,2)}, v{aW+bl} offset:{woff+k*4096+uu*1024}")
        loads(0); loads(1)
        for k in range(8):
            q.wait(f"w{k}")
            for bl in range(2):
                e(f"{MFMA} {v(acc+16*bl,16)}, {v(HA+4*k,4)}, {v(WF+8*(k%3)+4*bl,4)}, {'0' if k == 0 else v(acc+16*bl,16)}")
                if bl == 0 and k < 6: loads(k + 2)
            if fill: fill(q, k)
    def fill_b(q, k):
        h_frag(q, HA2, aH2, k)
        if k < 4:
            w_dma(4 + k)
            vm.issue("wt", f"global_load_dwordx4 {v(WTR+4*k,4)}, v{t+2}, {s(P_WH,2)}")
            e(f"v_add_u32 v{t+2}, s{sO1}, v{t+2}")
        elif k < 6:
            bl = k - 4
            vm.issue("w5", f"global_load_short_d16_hi v{Qr+4*bl+3}, v{aW5}, {s(P_WE,2)} offset:{bl*64}")
            for m in range(4):
                vm.issue("w5", f"global_load_short_d16_hi v{W5+4*bl+m}, v{aW5}, {s(P_WE,2)} offset:{(m+1)*256+bl*64}")
        elif k == 6:
            vm.issue("po", f"buffer_load_dword v{vPo}, v{aPo}, {s(rPOS,4)}, 0 offen")
            vm.issue("wx", f"global_load_dword v{vWx}, v{vWx}, {s(P_WX,2)}")
            vm.issue("wb", f"global_load_ushort v{vWb}, v{aWb}, {s(P_WH,2)}")
            vm.issue("wb", f"global_load_short_d16_hi v{vWb+1}, v{aWb}, {s(P_WH,2)} offset:256")
    e(f"v_readfirstlane_b32 s{sNon}, v{P+1}")
    gemm(T, HA1, aWs, 0, aH=aH1, fill=fill_b)
    st('gemmB')
    e(f"s_add_u32 s{sNon}, s{sNon}, 0x9e3779b9\ns_lshl_b32 s{sNon2}, s{sNon}, 22")
    e(f"s_cmp_lg_u32 s{sW}, 0\ns_cbranch_scc1 K_NOMA0")
    for i in range(4):
        e(f"v_lshrrev_b32 v{vC+i}, 5, v{vC+i}\nv_and_b32 v{vC+i}, 0x3ff800, v{vC+i}\nv_lshrrev_b32 v{vP+i}, 16, v{vP+i}")
        e(f"v_or3_b32 v{vD+2*i}, v{vC+i}, v{vP+i}, s{sNon2}\nv_mov_b32 v{vD+2*i+1}, s{sNon}")
    e("K_NOMA0:")
    e(f"s_lshl_b32 s{sA}, s2, 11\ns_add_u32 s{sA}, s{sA}, {WS_MA}\nv_lshl_add_u32 v{t}, v{vL}, 5, s{sA}")
    e(f"s_waitcnt vmcnt({vm.count('rec')}) lgkmcnt(0)\ns_barrier")
    st('b4')
    e(f"s_cmp_lg_u32 s{sW}, 0\ns_cbranch_scc1 K_NOMA")
    e(f"global_store_dwordx4 v{t}, {v(vD,4)}, {s(sWS,2)} {WT}\nglobal_store_dwordx4 v{t}, {v(vD+4,4)}, {s(sWS,2)} offset:16 {WT}")
    e("K_NOMA:")
    e(f"s_mov_b32 s{sA}, {hex(LOG2E)}\ns_mov_b32 s{sC}, 0x7fff0000")
    for r in range(13):
        lo, hi = T + r, T + 16 + r
        e(f"v_mul_f32 v{hi}, s{sA}, v{hi}\nv_cvt_pk_bf16_f32 v{lo}, v{lo}, v{hi}")
        e(f"v_and_b32 v{hi}, 0x7fffffff, v{hi}\nv_add_u32 v{hi}, 0x8000, v{hi}")
        e(f"v_sub_u32_sdwa v{hi}, v{hi}, v{lo} clamp dst_sel:DWORD dst_unused:UNUSED_PAD src0_sel:DWORD src1_sel:WORD_0")
        e(f"v_bfi_b32 v{lo}, s{sC}, v{hi}, v{lo}")
        if r & 3 == 3 or r == 12:
            for rr in range(r & ~3, r + 1):
                vm.issue("bst", f"buffer_store_dword v{T+rr}, v{vSt}, {s(rB,4)}, {so[rr>>2]} offen offset:{(rr&3)*1024} {WT}")
    vm.wait("wb")
    e(f"s_cmp_lg_u32 s{sW}, 7\ns_cbranch_scc1 K_NOWB")
    e(f"v_or_b32 v{vWb}, v{vWb+1}, v{vWb}\nv_lshlrev_b32 v{a}, 2, v{a}\nv_add_u32 v{a}, {WS_WB}, v{a}")
    e(f"global_store_dword v{a}, v{vWb}, {s(sWS,2)} {WT}")
    e(f"v_lshlrev_b32 v{a}, 2, v{vL}\ns_cmp_lg_u32 s2, 0\ns_cbranch_scc1 K_NOWB")
    e(f"global_store_dword v{a}, v{ZR}, {s(sWS,2)} {WT}")
    e("K_NOWB:")
    st('bstored')
    def lut_piece(lo, hi):
        e(f"s_lshl_b32 s{sA}, s{sW}, 10\ns_add_u32 m0, s{sA}, {L_LUT+lo*8192}")
        for i in range(lo, hi):
            if i == 12:
                e(f"s_cmp_gt_u32 s{sW}, 1\ns_cbranch_scc1 K_LUTOK\nglobal_load_lds_dwordx4 {v(vLa,2)}, off\nK_LUTOK:")
            else:
                if i == lo: e("s_nop 0")
                e(f"global_load_lds_dwordx4 {v(vLa,2)}, off")
                e(f"s_add_u32 m0, m0, 8192\nv_lshl_add_u64 {v(vLa,2)}, {v(vLa,2)}, 0, {s(sLut,2)}")
    e(f"v_bfe_u32 v{t}, v0, 5, 1\nv_mul_u32_u24 v{t}, 0x0202, v{t}\nv_lshl_or_b32 v{t}, v{t}, 16, v{t}\nv_xor_b32 v{t}, 0x05040100, v{t}\nv_xor_b32 v{t+1}, 0x02020202, v{t}")
    e(f"v_and_b32 v{t+3}, 16, v0\nv_lshlrev_b32 v{t+3}, 3, v{t+3}\nv_xor_b32 v{t+3}, v{t+3}, v{t+2}\nv_add_u32 v{t+3}, {L_WT-32768}, v{t+3}")
    for i in range(4):
        d, o = WTR + 4 * i, u + 4 * (i & 1)
        e(f"v_perm_b32 v{o}, v{d+1}, v{d}, v{t}\nv_perm_b32 v{o+1}, v{d+3}, v{d+2}, v{t}")
        e(f"v_perm_b32 v{o+2}, v{d+1}, v{d}, v{t+1}\nv_perm_b32 v{o+3}, v{d+3}, v{d+2}, v{t+1}")
        e(f"ds_write_b128 v{t+3}, {v(o,4)} offset:{8192*i}")
    e(f"s_lshl_b32 s{sA}, s{sW}, 16\ns_lshl_b32 s{sB_}, s2, 3\ns_add_u32 s{sA}, s{sA}, s{sB_}\ns_add_u32 s{sA}, s{sA}, {WS_MA}")
    e(f"v_lshl_add_u32 v{t+4}, v{vL}, 11, s{sA}\ns_mov_b32 exec_hi, 0")
    e(f"global_load_dwordx2 {v(vOFF,2)}, v{t+4}, {s(sWS,2)} sc1\ns_mov_b32 exec_hi, -1")
    e(f"v_min_u32 v{t}, 146, v0\nv_lshlrev_b32 v{t}, 3, v{t}\nv_lshlrev_b32 v{t+2}, 16, v{vPo}\nv_and_b32 v{t+3}, s{sHiM}, v{vPo}\nds_write_b64 v{t}, {v(t+2,2)} offset:{L_PACC}")
    e(f"v_and_b32 v{t}, 0x39, v{vL}\nv_bfe_u32 v{t+1}, v{vL}, 1, 1\nv_lshl_or_b32 v{t}, v{t+1}, 2, v{t}\nv_bfe_u32 v{t+1}, v{vL}, 2, 1\nv_lshl_or_b32 v{t}, v{t+1}, 1, v{t}")
    e(f"v_lshlrev_b32 v{t}, 2, v{t}\nds_write_b32 v{t}, v{vWx} offset:{L_WX}")
    srd(e, rREC, sWS, 256 * CH * 12, off=WS_REC)
    e(f"s_lshl_b32 s{sA}, s{sHF}, 7\ns_add_u32 s{sA}, s{sA}, {WS_B-128}")
    srd(e, rB, sWS, "-1", off=f"s{sA}", w3="0x800000", stride=4)
    e(f"s_lshl_b32 s{sA}, s{sHF}, 14\ns_add_u32 s{sA}, s{sA}, {WS_WB}")
    srd(e, rX, sWS, 16384, off=f"s{sA}")
    e(f"s_mul_i32 s{sScr}, s{sW}, {SLICE}\ns_add_u32 s{sScr}, s{sScr}, {L_TILES}")
    e(f"s_mov_b32 s{sA}, {hex(LOG2E)}")
    for k in range(4): e(f"v_mul_f32 v{W5+4+k}, s{sA}, v{W5+4+k}")
    e(f"v_mul_f32 v{Qr+7}, s{sA}, v{Qr+7}")
    for bl in range(2):
        e(f"v_cvt_pk_bf16_f32 v{P+4*bl}, v{W5+4*bl}, v{W5+4*bl+1}\nv_cvt_pk_bf16_f32 v{P+4*bl+1}, v{W5+4*bl+2}, v{W5+4*bl+3}")
        e(f"v_mov_b32 v{P+4*bl+2}, 0\nv_mov_b32 v{P+4*bl+3}, 0")
    e("s_waitcnt lgkmcnt(0)")

    e("K_ROUND:")
    e(f"v_lshl_add_u32 v{t+7}, v{vL}, 4, s{sScr}")
    for i in range(7): e(f"ds_write_b128 v{t+7}, {v(ZR,4)} offset:{1024*i}")
    e(f"s_mov_b32 exec_hi, 0\nds_write_b128 v{t+7}, {v(ZR,4)} offset:7168")
    e(f"v_lshlrev_b32 v{t}, 2, v{vL}\nds_write_b32 v{t}, v{ZR} offset:{L_CNT}")
    st('zeroed')
    e(f"s_cmp_lg_u32 s{sRound}, 0\ns_cbranch_scc1 K_HAVEA\ns_mov_b32 s{sC}, 0")
    e("K_POLLA:")
    e(f"s_waitcnt vmcnt(0)\nv_xor_b32 v{t}, s{sNon2}, v{vOFF}\nv_lshrrev_b32 v{t}, 22, v{t}\nv_xor_b32 v{t+1}, s{sNon}, v{vOFF+1}\nv_or_b32 v{t}, v{t}, v{t+1}")
    e(f"v_cmp_ne_u32 vcc, 0, v{t}\ns_add_u32 s{sC}, s{sC}, 1\ns_cbranch_vccz K_HAVEA")
    e(f"s_cmp_gt_u32 s{sC}, {SPIN}\ns_cbranch_scc1 K_END")
    e(f"global_load_dwordx2 {v(vOFF,2)}, v{t+4}, {s(sWS,2)} sc1\ns_branch K_POLLA")
    e("K_HAVEA:\ns_mov_b32 exec_hi, -1")
    st('haveA')
    REC = F
    e(f"v_bfe_u32 v{t}, v{vOFF}, 11, 11\nv_mov_b32 v{t+1}, v{t}")
    e(f"s_lshl_b32 s{sA}, s{sW}, 5\nv_add_u32 v{t+2}, s{sA}, v{vL}\nv_and_b32 v{t+3}, 0x7ff, v{vOFF}\ns_movk_i32 s{sA}, {CH}\nv_mad_u32_u24 v{t+2}, v{t+2}, s{sA}, v{t+3}")
    scan_dpp(e, "v_add_u32", t + 1, full=False)
    e(f"v_cmp_ne_u32 vcc, 0, v{t}\nv_readlane_b32 s{sTot}, v{t+1}, 31\nv_sub_u32 v{t+1}, v{t+1}, v{t}\nv_sub_u32 v{t+2}, v{t+2}, v{t+1}")
    e(f"v_sub_u32 v{t+1}, v{t+1}, s{sBeta} clamp\ns_movk_i32 s{sA}, 256\nv_cmp_gt_u32 {s(sT2,2)}, s{sA}, v{t+1}")
    e(f"v_lshl_add_u32 v{t+1}, v{t+1}, 2, s{sScr}")
    e(f"s_and_b64 exec, vcc, {s(sT2,2)}\nds_max_u32 v{t+1}, v{t+2}\ns_mov_b64 exec, -1")
    e(f"ds_read_b128 {v(u,4)}, v{t+7}\nv_lshl_add_u32 v{t+6}, v{vL}, 2, s{sScr}\nv_mov_b32 v{t+1}, 0\ns_waitcnt lgkmcnt(0)")
    e(f"v_max3_u32 v{t}, v{u}, v{u+1}, v{u+2}\nv_max_u32 v{t}, v{t}, v{u+3}")
    scan_dpp(e, "v_max_u32", t)
    e(f"s_nop 1\nv_mov_b32_dpp v{t+1}, v{t} wave_shr:1 row_mask:0xf bank_mask:0xf")
    e(f"v_max_u32 v{u}, v{u}, v{t+1}")
    for i in range(3): e(f"v_max_u32 v{u+i+1}, v{u+i+1}, v{u+i}")
    e(f"ds_write_b128 v{t+7}, {v(u,4)}")
    for i in range(4): e(f"ds_read_b32 v{u+4+i}, v{t+6} offset:{256*i}")
    e(f"ds_write_b128 v{t+7}, {v(ZR,4)}")
    e(f"v_add_u32 v{t}, s{sBeta}, v{vL}\nv_mov_b32 v{t+5}, -16")
    for i in range(4):
        if i: e(f"v_add_u32 v{t}, 64, v{t}")
        e(f"v_cmp_gt_u32 vcc, s{sTot}, v{t}\ns_waitcnt lgkmcnt({4-i})")
        e(f"v_add_u32 v{t+1}, v{t}, v{u+4+i}\nv_mul_u32_u24 v{t+1}, 12, v{t+1}")
        e(f"s_andn2_b64 {s(sM+2*i,2)}, vcc, {s(sDn+2*i,2)}")
        e(f"v_cndmask_b32 v{t+1}, v{t+5}, v{t+1}, {s(sM+2*i,2)}")
        e(f"buffer_load_dwordx3 {v(REC+4*i,3)}, v{t+1}, {s(rREC,4)}, 0 offen sc1")
    e(f"s_lshl_b32 s{sA}, s2, 7\ns_add_u32 s{sA}, s{sA}, {WS_FB}\nv_mov_b32 v{t}, s{sA}\nv_mov_b32 v{t+2}, s{sNon}\nv_not_b32 v{t+3}, s{sNon}")
    e(f"s_lshl_b32 s{sA}, s{sW}, 12\ns_add_u32 s{sA}, s{sA}, {WS_FB}\nv_and_b32 v{M+6}, 31, v{vL}\nv_lshl_add_u32 v{M+6}, v{M+6}, 7, s{sA}")
    st('recissued')
    e("s_waitcnt lgkmcnt(0)\ns_barrier")
    st('b5')
    e(f"s_cmp_lg_u32 s{sRound}, 0\ns_cbranch_scc1 K_NOGEMM")
    e(f"s_cmp_lg_u32 s{sW}, 1\ns_cbranch_scc1 K_NOFB\ns_mov_b64 exec, 1")
    e(f"global_store_dwordx2 v{t}, {v(t+2,2)}, {s(sWS,2)} {WT}\ns_mov_b64 exec, -1")
    e("K_NOFB:")
    lut_piece(0, 4)
    gemm(T, HA2, aWs, 32768)
    def fill_g(q, k):
        ops = []
        for bl in range(2):
            b = T + 16 * bl
            if bl: ops += [f"v_mul_f32 v{b+r}, s{sA}, v{b+r}" for r in range(16) if r & 7 != 7]
            for m in range(3):
                ops += [f"v_cvt_pk_bf16_f32 v{Rr+4*bl+m}, v{b+8+2*m}, v{b+8+2*m+1}", f"v_cvt_pk_bf16_f32 v{Qr+4*bl+m}, v{b+2*m}, v{b+2*m+1}"]
            ops += [f"v_cvt_pk_bf16_f32 v{Rr+4*bl+3}, v{b+14}, v{Qr+4*bl+3}", f"v_cvt_pk_bf16_f32 v{Qr+4*bl+3}, v{b+6}, v{Qr+4*bl+3}"]
        for x in ops[4 * k: 4 * k + 4]: e(x)
    e(f"s_mov_b32 s{sA}, {hex(LOG2E)}")
    gemm(Z, HA1, aWt, 0, fill=fill_g)
    e("K_NOGEMM:")
    st('gemms')
    PS, PD, aR, aW4, RK, G4 = MC, DH, DL, DL + 4, DL + 8, DL + 12
    e("s_waitcnt vmcnt(0)")
    for i in range(4):
        w = REC + 4 * i + 2
        e(f"v_lshrrev_b32 v{t+i}, 8, v{w}\nv_mul_u32_u24 v{t+i}, 6, v{t+i}\nv_and_b32 v{t+i}, -4, v{t+i}")
        e(f"v_lshlrev_b32 v{G4+i}, 2, v{w}\nv_and_b32 v{t+4+i}, 0x1fc, v{G4+i}\nv_and_b32 v{G4+i}, 60, v{G4+i}")
        e(f"s_mov_b64 exec, {s(sM+2*i,2)}\nds_add_rtn_u32 v{RK+i}, v{G4+i}, v{vFour} offset:{L_CNT}\ns_mov_b64 exec, -1")
    e(f"global_load_dwordx2 {v(M,2)}, v{M+6}, {s(sWS,2)} sc1")
    for i in range(4):
        e(f"buffer_load_dwordx2 {v(PS+2*i,2)}, v{t+i}, {s(rPOS,4)}, 0 offen")
    st('ranked')
    e(f"s_movk_i32 s{sA}, {4*CAP}\ns_movk_i32 s{sB_}, {5*TB//4}\ns_mov_b64 {s(sT2,2)}, 0\ns_waitcnt lgkmcnt(0)")
    for i in range(4):
        w = REC + 4 * i + 2
        e(f"v_cmp_gt_u32 vcc, s{sA}, v{RK+i}\nv_and_b32 v{aR+i}, 124, v{RK+i}")
        e(f"v_lshrrev_b32 v{t}, 7, v{RK+i}\nv_mul_u32_u24 v{t}, {TB}, v{t}\nv_mad_u32_u24 v{G4+i}, v{G4+i}, s{sB_}, v{t}")
        e(f"s_andn2_b64 {s(sCn,2)}, {s(sM+2*i,2)}, vcc\ns_or_b64 {s(sT2,2)}, {s(sT2,2)}, {s(sCn,2)}")
        e(f"v_add_u32 v{t+1}, v{aR+i}, v{G4+i}")
        e(f"v_and_b32 v{t+2}, 16, v{RK+i}\nv_and_b32 v{t+3}, 0xffffff80, v{w}\nv_mad_i32_i24 v{t+2}, v{t+2}, -8, v{t+3}")
        e(f"s_and_b64 {s(sM+2*i,2)}, {s(sM+2*i,2)}, vcc\ns_mov_b64 exec, {s(sM+2*i,2)}")
        e(f"ds_write_b32 v{t+1}, v{t+2} offset:{L_TILES+512}\ns_mov_b64 exec, -1")
    e(f"s_cmp_eq_u64 {s(sT2,2)}, 0\ns_cbranch_scc1 K_NOPEND\nds_write_b32 v{ZR}, v{vFour} offset:{L_FLAG}\nK_NOPEND:")
    e(f"s_add_u32 s{sA}, s{sBeta}, 256\ns_cmp_le_u32 s{sTot}, s{sA}\ns_cbranch_scc1 K_NOMORE\nds_write_b32 v{ZR}, v{vFour} offset:{L_FLAG+4}\nK_NOMORE:")
    st('placed')
    e(f"s_mov_b32 s{sC}, 0\ns_waitcnt vmcnt(4)")
    e("K_POLLB:")
    e(f"v_xor_b32 v{t}, s{sNon}, v{M}\nv_xnor_b32 v{t+1}, s{sNon}, v{M+1}\nv_or_b32 v{t}, v{t}, v{t+1}")
    e(f"v_cmp_ne_u32 vcc, 0, v{t}\ns_add_u32 s{sC}, s{sC}, 1\ns_cbranch_vccz K_HAVEB")
    e(f"s_cmp_gt_u32 s{sC}, {SPIN}\ns_cbranch_scc1 K_END")
    e(f"global_load_dwordx2 {v(M,2)}, v{M+6}, {s(sWS,2)} sc1\ns_waitcnt vmcnt(0)\ns_branch K_POLLB")
    e("K_HAVEB:")
    st('haveB')
    e(f"s_mul_i32 s{sB0}, s{sT}, {5*TB}\ns_add_u32 s{sB0}, s{sB0}, {L_TILES}\nv_add_u32 v{aI}, s{sB0}, v{cI}")
    e(f"v_and_b32 v{t}, 31, v{vL}\nv_lshlrev_b32 v{t}, 2, v{t}")
    e("s_waitcnt lgkmcnt(0)\ns_barrier")
    st('b7')
    def idx_reads(Sx):
        for k in range(4): e(f"ds_read_b128 {v(RAW+16*Sx+4*k,4)}, v{aI} offset:{32*k}")
    e(f"ds_read_b32 v{t}, v{t} offset:{L_CNT}")
    idx_reads(0)
    e(f"s_waitcnt lgkmcnt(4)\nv_readlane_b32 s{sCn}, v{t}, s{sT}\ns_movk_i32 s{sA}, {TB}\ns_cmp_gt_u32 s{sCn}, 128\ns_cselect_b32 s{sA}, s{sA}, {20*TB}")
    e(f"v_add_u32 v{aI}, s{sA}, v{aI}")
    idx_reads(1)
    e("s_waitcnt lgkmcnt(4)"); row_loads(0)
    st('pref0')
    for i in range(4):
        e(f"v_mul_u32_u24 v{t+4+i}, 3, v{t+4+i}\nds_bpermute_b32 v{aW4+i}, v{aR+i}, v{cE}")
        if i == 0: e("s_waitcnt lgkmcnt(1)")
        e(f"ds_read2_b32 {v(PD+4*i,2)}, v{t+4+i} offset0:{L_PACC//4} offset1:{L_PACC//4+1}\nds_read_b32 v{PD+4*i+2}, v{t+4+i} offset:{L_PACC+8}")
        e(f"v_lshl_add_u32 v{aR+i}, v{aR+i}, 2, v{G4+i}\ns_or_b64 {s(sDn+2*i,2)}, {s(sDn+2*i,2)}, {s(sM+2*i,2)}")
    e(f"v_readlane_b32 s{sPend}, v{t}, 16\nv_readlane_b32 s{sMore}, v{t}, 17")
    for g in range(1, 4):
        e(f"s_add_u32 s{sA}, s{sT}, {4*g}\nv_readlane_b32 s{sCn+g}, v{t}, s{sA}")
    for g in range(4):
        e(f"s_min_u32 s{sCn+g}, s{sCn+g}, {4*CAP}\ns_add_u32 s{sA}, s{sCn+g}, 124\ns_lshr_b32 s{sA}, s{sA}, 7\ns_max_u32 s{sA}, s{sA}, 1")
        e(f"s_add_u32 s{sCu+g}, s{sA}, " + ("0" if g == 0 else f"s{sCu+g-1}"))
    e(f"s_sub_u32 s{sA}, s{sCu+3}, 1\nv_min_u32 v{t}, s{sA}, v{vL}")
    e(f"v_mov_b32 v{t+1}, v{t}\nv_mov_b32 v{t+2}, s{sCn}\nv_mov_b32 v{t+3}, 0")
    for g in range(1, 4):
        e(f"v_cmpx_le_u32 vcc, s{sCu+g-1}, v{t}")
        e(f"v_subrev_u32 v{t+1}, s{sCu+g-1}, v{t}\nv_mov_b32 v{t+2}, s{sCn+g}\nv_mov_b32 v{t+3}, {20*g}")
    e("s_mov_b64 exec, -1")
    e(f"v_add_u32 v{t+3}, v{t+3}, v{t+1}\nv_mul_u32_u24 v{t+3}, {TB}, v{t+3}\nv_add_u32 v{vDesc}, s{sB0}, v{t+3}")
    e(f"v_lshlrev_b32 v{t+4}, 7, v{t+1}\nv_sub_u32 v{t+2}, v{t+2}, v{t+4}")
    e(f"v_add_u32 v{t+4}, 28, v{t+2}\nv_lshrrev_b32 v{t+4}, 5, v{t+4}\nv_med3_u32 v{t+4}, v{t+4}, 1, 4\nv_or_b32 v{t+3}, v{t+4}, v{vDesc}")
    e(f"v_cmp_lt_u32 vcc, 0x80, v{t+2}\ns_nop 0")
    e(f"v_mov_b32_dpp v{vDesc}, v{t+3} wave_shl:1 row_mask:0xf bank_mask:0xf")
    e(f"v_readlane_b32 s{sD}, v{t+3}, 0\ns_nop 0")
    e(f"v_mov_b32_dpp v{t+4}, v{vDesc} wave_shl:1 row_mask:0xf bank_mask:0xf")
    e(f"v_and_b32 v{t+5}, 4, v{vDesc}\nv_lshlrev_b32 v{t+5}, 2, v{t+5}\nv_cndmask_b32_e64 v{t+5}, 8, v{t+5}, vcc")
    e(f"v_and_b32 v{t+4}, 0xff00, v{t+4}\nv_lshl_or_b32 v{vDesc}, v{t+4}, 16, v{vDesc}\nv_or_b32 v{vDesc}, v{vDesc}, v{t+5}")
    st('desc')
    e(f"s_waitcnt vmcnt(16)\ns_cmp_lg_u32 s{sRound}, 0\ns_cbranch_scc1 K_NOZS")
    lut_piece(4, 13)
    e(f"s_mov_b32 s{sA}, {hex(LOG2E)}")
    for r in range(32):
        if r & 15 < 13: e(f"v_mul_f32 v{Z+r}, s{sA}, v{Z+r}")
    e(f"s_or_b32 s{sA}, s2, s{sW}\ns_cmp_lg_u32 s{sA}, 0\ns_cbranch_scc1 K_NOZS")
    e(f"v_mov_b32 v{t}, {WS_NONCE}\nv_mov_b32 v{t+1}, s{sNon}\ns_mov_b64 exec, 1\nglobal_store_dword v{t}, v{t+1}, {s(sWS,2)} {WT}\ns_mov_b64 exec, -1")
    e("K_NOZS:")
    st('lut2')
    e(f"s_waitcnt lgkmcnt(0)\ns_mov_b32 s{sA}, 0xbf80")
    for i in range(4):
        w = REC + 4 * i + 2
        ps, pd = PS + 2 * i, PD + 4 * i
        row_loads(1, 4 * i, 4 * i + 4)
        e(f"v_lshrrev_b32 v{t}, 4, v{w}\nv_and_b32 v{t}, 16, v{t}\nv_lshlrev_b32_e64 v{t}, v{t}, s{sA}\nv_alignbit_b32 v{t+1}, v{ps+1}, v{ps}, 16")
        e(f"v_dot2_f32_bf16 v{pd}, v{ps}, v{t}, v{pd}\nv_dot2_f32_bf16 v{pd+1}, v{t+1}, v{t}, v{pd+1}\nv_dot2_f32_bf16 v{pd+2}, v{ps+1}, v{t}, v{pd+2}")
        e(f"v_lshrrev_b32 v{t+2}, 1, v{w}\nv_and_b32 v{t+2}, 6, v{t+2}\nv_perm_b32 v{t+2}, v{t+2}, v{t+2}, 0")
        e(f"v_cvt_pk_bf16_f32 v{t+4}, 0, v{pd}\nv_cvt_pk_bf16_f32 v{t+5}, v{pd+1}, v{pd+2}")
        e(f"v_dot2_f32_bf16 v{t+6}, v{t+4}, v{t+4}, 0\nv_dot2_f32_bf16 v{t+6}, v{t+5}, v{t+5}, v{t+6}")
        e(f"v_xor_b32 v{t+3}, 0x07060504, v{t+2}\nv_xor_b32 v{t+2}, 0x03020100, v{t+2}\nv_or_b32 v{t+4}, 0x3f80, v{t+4}\nv_and_b32 v{t+7}, 0x70, v{w}")
        e(f"v_cvt_pk_bf16_f32 v{t+6}, 0, v{t+6}\nv_add3_u32 v{t+6}, v{t+6}, v{t+7}, 16")
        e(f"v_perm_b32 v{w}, v{t+5}, v{t+4}, v{t+2}\nv_perm_b32 v{w+1}, v{t+5}, v{t+4}, v{t+3}\nv_add_u32 v{aW4+i}, v{aW4+i}, v{G4+i}")
        e(f"s_mov_b64 exec, {s(sM+2*i,2)}")
        e(f"ds_write_b128 v{aR+i}, {v(REC+4*i,4)} offset:{L_TILES}\nds_write_b32 v{aW4+i}, v{t+6} offset:{L_TILES}")
        e("s_mov_b64 exec, -1")
    st('feat')
    ml3.gswitch(e, Rn, 0)
    e(f"s_mov_b32 s{sGQ}, 0\ns_mov_b32 s{sGM}, 0x11111111\ns_mov_b32 s{sGM+1}, 0x11111111\ns_mov_b32 s{sI}, 0")
    e(f"s_mov_b32 s{sPM}, 0xffffff\ns_cmp_lt_u32 s{sT}, 2\ns_cselect_b32 s{sPM}, 0xfffffff, s{sPM}")
    for bl in range(2): e(f"{MFMA} {v(T+16*bl,16)}, {v(ZR,4)}, {v(ZR,4)}, 0")
    e(f"v_add_u32 v{aE}, s{sB0}, v{cE}\nv_add_u32 v{aN}, s{sB0}, v{cX}\nv_add_u32 v{aX}, s{sB0}, v{cX2}")
    e("s_waitcnt vmcnt(16) lgkmcnt(0)\ns_barrier")
    e(f"ds_read_b32 v{vWt}, v{aE}\nds_read_b128 {v(NID,4)}, v{aN}\ns_waitcnt lgkmcnt(1)")
    e(f"v_perm_b32 v{aE}, v{vWt}, v{aE}, v{cM}\nds_read_b128 {v(F,4)}, v{aE}\ns_waitcnt lgkmcnt(0)")
    e(f"v_bfi_b32 v{F+3}, s{sHiM}, v{vWt}, v{F+3}")
    st('main')
    e("s_setprio 1\ns_branch M_SEL")
    ml3.main_loop(e, Rn)
    st('mainend')
    WB = RAW
    e(f"v_lshlrev_b32 v{u}, 4, v{vL}\ns_movk_i32 s{sA}, 4096\ns_movk_i32 s{sB_}, 12288\ns_waitcnt vmcnt(0)")
    for k in range(16):
        e(f"buffer_load_dwordx4 {v(WB+4*k,4)}, v{u}, {s(rX,4)}, {['0', f's{sA}', f's{sO1}', f's{sB_}'][k>>2]} offen offset:{(k&3)*1024} sc1")
    for r in range(13):
        e(f"buffer_load_dword v{T+16+r}, v{vSt}, {s(rH,4)}, {so[r>>2]} offen offset:{(r&3)*1024}")
    e(f"s_lshl_b32 s{sA}, s{sW}, 12\nv_add_u32 v{u}, s{sA}, v{u}\nv_xor_b32 v{u+1}, 4096, v{u}")
    e("s_waitcnt lgkmcnt(0)\ns_barrier")
    for k in range(4): e(f"ds_write_b128 v{u}, {v(MC+4*k,4)} offset:{L_TILES+1024*k}")
    e(f"v_min_u32 v{u+2}, 146, v0\nv_lshlrev_b32 v{u+3}, 3, v{u+2}\nds_read_b64 {v(u+4,2)}, v{u+3} offset:{L_PACC}")
    e("s_waitcnt lgkmcnt(0)\ns_barrier")
    for k in range(4): e(f"ds_read_b128 {v(T+4*k,4)}, v{u+1} offset:{L_TILES+1024*k}")
    e(f"v_add_f32 v{vPa}, v{vPa}, v{u+4}\nv_add_f32 v{vPa+1}, v{vPa+1}, v{u+5}")
    e(f"s_cmp_eq_u32 s{sHF}, 0\ns_waitcnt vmcnt(13) lgkmcnt(0)\ns_cbranch_scc0 K_FIN1")
    for hf in range(2):
        if hf: e("K_FIN1:")
        for ks in range(8):
            a_ = (MC if (ks >> 2) == hf else T) + 4 * (ks & 3)
            for par in range(2):
                e(f"{MFMA} {v(Z+16*par,16)}, {v(a_,4)}, {v(WB+32*par+4*ks,4)}, {v(Z+16*par,16)}")
        if not hf: e("s_branch K_FIN2")
    e("K_FIN2:")
    e(f"s_or_b32 s{sA}, s{sPend}, s{sMore}\ns_cmp_eq_u32 s{sA}, 0\ns_cbranch_scc1 K_FINAL")
    e(f"s_add_u32 s{sRound}, s{sRound}, 1\ns_cmp_lg_u32 s{sPend}, 0\ns_cbranch_scc1 K_AGAIN")
    e(f"s_add_u32 s{sBeta}, s{sBeta}, 256")
    for i in range(4): e(f"s_mov_b64 {s(sDn+2*i,2)}, 0")
    e("K_AGAIN:")
    e(f"v_lshlrev_b32 v{u+4}, 16, v{vPo}\nv_and_b32 v{u+5}, s{sHiM}, v{vPo}\nds_write_b64 v{u+3}, {v(u+4,2)} offset:{L_PACC}")
    e(f"v_sub_f32 v{vPa}, v{vPa}, v{u+4}\nv_sub_f32 v{vPa+1}, v{vPa+1}, v{u+5}")
    ml3.grestore(e, Rn)
    e("s_waitcnt vmcnt(0) lgkmcnt(0)\ns_barrier\ns_branch K_ROUND")
    e("K_FINAL:")
    st('final')
    e(f"s_mul_i32 s{sA}, s2, 588")
    srd(e, rPOS, sOUT, N * 6, off=N * 256)
    e(f"v_cvt_pk_bf16_f32 v{vPa}, v{vPa}, v{vPa+1}\nv_lshl_add_u32 v{u+2}, v{u+2}, 2, s{sA}")
    e(f"s_cmp_gt_u32 s{sW}, 2\ns_cbranch_scc1 K_NOPOS")
    e(f"buffer_store_dword v{vPa}, v{u+2}, {s(rPOS,4)}, 0 offen {WT}")
    e("K_NOPOS:")
    e(f"s_mov_b32 s{sA}, {hex(LN2)}\ns_waitcnt vmcnt(1)")
    for r0 in range(0, 13, 4):
        rs = list(range(r0, min(r0 + 4, 13)))
        regs = [Z + r for r in rs] + [Z + 16 + r for r in rs]
        n = len(regs)
        for k, r in enumerate(regs): e(f"v_exp_f32 v{t+k}, -v{r}")
        e("s_nop 0")
        for k in range(0, n, 2): e(f"v_pk_add_f32 {v(t+k,2)}, {v(t+k,2)}, 1.0 op_sel_hi:[1,0]")
        for k in range(n): e(f"v_rcp_f32 v{t+k}, v{t+k}")
        e("s_nop 0")
        if n == 8:
            for k in range(0, n, 2): e(f"v_pk_mul_f32 {v(regs[k],2)}, {v(regs[k],2)}, {v(t+k,2)}")
        else:
            for k, r in enumerate(regs): e(f"v_mul_f32 v{r}, v{r}, v{t+k}")
        if r0 == 12: e("s_waitcnt vmcnt(12)")
        for r in rs:
            h = T + 16 + r
            e(f"v_lshlrev_b32 v{t}, 16, v{h}\nv_and_b32 v{h}, s{sHiM}, v{h}")
            e(f"v_fmac_f32 v{t}, s{sA}, v{Z+r}\nv_fmac_f32 v{h}, s{sA}, v{Z+16+r}")
            e(f"v_cvt_pk_bf16_f32 v{h}, v{t}, v{h}")
            e(f"buffer_store_dword v{h}, v{vSt}, {s(rO,4)}, {so[r>>2]} offen offset:{(r&3)*1024} {WT}")
    st('stored')
    if STAMP:
        e("s_waitcnt vmcnt(0)")
        st('drained')
        e(f"s_lshl_b32 s{sA}, s2, 3\ns_add_u32 s{sA}, s{sA}, s{sW}\ns_lshl_b32 s{sA}, s{sA}, 7\ns_add_u32 s{sA}, s{sA}, 0x4000000")
        e(f"v_lshl_add_u32 v{t}, v{vL}, 2, s{sA}\ns_mov_b32 exec_hi, 0\nglobal_store_dword v{t}, v{vStamp}, {s(sWS,2)}")
        e("; stamps: " + " ".join(names))
    e("K_END:\ns_endpgm")
    return V.hi, S.hi

def main():
    e = Asm()
    e(f".amdgcn_target \"amdgcn-amd-amdhsa--gfx950\"\n.text\n.globl {KN}\n.p2align 8\n.type {KN},@function")
    nv, ns = kernel(e)
    body = e.text()
    for h in check(body): print(h)
    body += ".p2align 8\n.type silu_table,@object\nsilu_table:\n" + "\n".join(lut.asm_lines()) + "\n.fill 64, 8, 0\n.size silu_table, .-silu_table\n"
    tail = f""".section .rodata,"a"
.p2align 6
.amdhsa_kernel {KN}
  .amdhsa_next_free_vgpr {nv}
  .amdhsa_next_free_sgpr {ns}
  .amdhsa_accum_offset {(nv+3)//4*4}
  .amdhsa_group_segment_fixed_size 0
  .amdhsa_kernarg_size 88
  .amdhsa_user_sgpr_count 2
  .amdhsa_user_sgpr_kernarg_segment_ptr 1
  .amdhsa_system_sgpr_workgroup_id_x 1
  .amdhsa_float_denorm_mode_32 3
.end_amdhsa_kernel
"""
    head = HDR + "; @launch grid=(256,1,1) block=(512,1,1) lds=163840\n"
    out = sys.argv[1] if len(sys.argv) > 1 else "standalone__cheap_equivariant_egnn__graph.s"
    open(out, "w").write(head + body + tail)
    print("v%d s%d" % (nv, ns))

if __name__ == "__main__":
    main()
```
